```python
import torch

def _softmax(x, axis=-1):
    return torch.softmax(x, dim=axis)
def _gelu(x):
    return torch.nn.functional.gelu(x, approximate="tanh")
def _silu(x):
    return torch.nn.functional.silu(x)
def _sigmoid(x):
    return torch.sigmoid(x)
def _layernorm(x, axis=-1, eps=1e-5):
    m = x.mean(dim=axis, keepdim=True)
    v = x.var(dim=axis, keepdim=True, unbiased=False)
    return (x - m) / torch.sqrt(v + eps)
def _scatter_add(tgt, idx, src, axis=0):
    return tgt.clone().index_add_(axis, idx, src)
def _segment_sum(src, seg, n):
    out = torch.zeros((n,) + src.shape[1:], dtype=src.dtype)
    return out.index_add_(0, seg, src)
def _pad(x, pw):
    flat = tuple(v for pair in reversed(pw) for v in pair)
    return torch.nn.functional.pad(x, flat)

kernel_name = 'gated_mix__mha_block__mixer_s_mlp__prompt'

def setup_inputs():

    _w = (lambda a: (lambda t: t.to(torch.bfloat16) if t.is_floating_point() else t)(torch.as_tensor(a)))
    def _A_setup():
        B, S, D, H = 1, 2048, 512, 32
        return {
            "x": _w((lambda *s: torch.randn(*s, dtype=torch.bfloat16) * 0.05)(B, S, D)),
            "wqkv": _w((lambda *s: torch.randn(*s, dtype=torch.bfloat16) * 1.6)(D, 3 * D)),
            "wo": _w((lambda *s: torch.randn(*s, dtype=torch.bfloat16) * 0.1)(D, D)),
        }
    _A_in = _A_setup()

    def _B_setup():
        B, S, D, F = 1, 2048, 512, 1792
        return {
            "x":  _w((lambda *s: torch.randn(*s, dtype=torch.bfloat16) * 0.05)(B, S, D)),
            "w1": _w((lambda *s: torch.randn(*s, dtype=torch.bfloat16) * 3.2)(D, D) * (D ** -0.5)),
            "w2": _w((lambda *s: torch.randn(*s, dtype=torch.bfloat16) * 3.2)(D, D) * (D ** -0.5)),
            "w3": _w((lambda *s: torch.randn(*s, dtype=torch.bfloat16) * 3.2)(D, F) * (D ** -0.5)),
            "w4": _w((lambda *s: torch.randn(*s, dtype=torch.bfloat16) * 1.6)(F, D) * (F ** -0.5)),
        }
    _B_in = _B_setup()

    return {
        "A_x": _A_in["x"],
        "A_wqkv": _A_in["wqkv"],
        "A_wo": _A_in["wo"],
        "B_x": _B_in["x"],
        "B_w1": _B_in["w1"],
        "B_w2": _B_in["w2"],
        "B_w3": _B_in["w3"],
        "B_w4": _B_in["w4"],
        "gate_w": _w((lambda *s: torch.randn(*s, dtype=torch.bfloat16) * 0.05)(512) * 16.0),
    }

def reference(A_x, A_wqkv, A_wo, B_x, B_w1, B_w2, B_w3, B_w4, gate_w):
    def _A_ref(x, wqkv, wo):
        B, S, D = x.shape
        H = 32
        Dh = D // H
        qkv = (lambda x, *d: x.permute(*d))((x @ wqkv).reshape(B, S, 3, H, Dh), 2, 0, 3, 1, 4)
        q, k, v = qkv[0], qkv[1], qkv[2]
        scores = torch.einsum("bhqd,bhkd->bhqk", q, k) * (Dh ** -0.5)
        p = _softmax(scores, axis=-1)
        o = torch.einsum("bhqk,bhkd->bhqd", p, v)
        return (lambda x, *d: x.permute(*d))(o, 0, 2, 1, 3).reshape(B, S, D) @ wo

    def _B_ref(x, w1, w2, w3, w4):
        B, S, D = x.shape
        h = _gelu(_layernorm(x, axis=-1) @ w1)
        c = D // 4
        g0 = _pad(h[:, :, 0*c:1*c], ((0, 0), (1, 0), (0, 0)))[:, :S, :]
        g1 = _pad(h[:, :, 1*c:2*c], ((0, 0), (0, 1), (0, 0)))[:, 1:, :]
        g2 = _pad(h[:, :, 2*c:3*c], ((0, 0), (2, 0), (0, 0)))[:, :S, :]
        g3 = _pad(h[:, :, 3*c:   ], ((0, 0), (0, 2), (0, 0)))[:, 2:, :]
        hs = torch.concatenate([g0, g1, g2, g3], axis=-1) @ w2
        x1 = x + hs
        h2 = _gelu(_layernorm(x1, axis=-1) @ w3) @ w4
        return x1 + h2

    x = A_x
    g = _sigmoid((x * gate_w).sum(-1, keepdims=True))
    a = _A_ref(x, A_wqkv, A_wo)
    b = _B_ref(x, B_w1, B_w2, B_w3, B_w4)
    return g * a + (1 - g) * b
```

```python
class Asm:
    def __init__(self):
        self.lines = []
        self.uid = 0
    filt = None
    def __call__(self, s):
        for l in s.strip("\n").split("\n"):
            if self.filt and self.filt(l.strip()): continue
            self.lines.append("    " + l.strip() if not l.strip().endswith(":") else l.strip())
    def label(self, name):
        self.lines.append(name + ":")
    def newlabel(self, base="L"):
        self.uid += 1
        return f"{base}_{self.uid}"
    def comment(self, s):
        self.lines.append("    ; " + s)
    def text(self):
        return "\n".join(self.lines) + "\n"

class Regs:
    def __init__(self, start, limit, kind):
        self.next = start; self.limit = limit; self.kind = kind; self.names = {}
        self.high = start
    def alloc(self, name, n=1, align=1):
        p = (self.next + align - 1) // align * align
        assert p + n <= self.limit, f"out of {self.kind} regs allocating {name} ({p}+{n} > {self.limit})"
        self.next = p + n
        self.high = max(self.high, self.next)
        self.names[name] = (p, n)
        return p
    def mark(self):
        return self.next
    def release(self, mark):
        self.next = mark

def vr(base, n=1):
    return f"v{base}" if n == 1 else f"v[{base}:{base+n-1}]"
def sr(base, n=1):
    return f"s{base}" if n == 1 else f"s[{base}:{base+n-1}]"

def f2u(x):
    import struct
    return struct.unpack("<I", struct.pack("<f", x))[0]
def hexf(x):
    return f"0x{f2u(x):08x}"

def kernel_header(a, name):
    a.lines.append(f".globl {name}")
    a.lines.append(".p2align 8")
    a.lines.append(f".type {name},@function")
    a.lines.append(f"{name}:")

def kernel_desc(name, vgpr, sgpr):
    acc = (vgpr + 3) // 4 * 4
    return f""".p2align 6
.amdhsa_kernel {name}
  .amdhsa_next_free_vgpr {vgpr}
  .amdhsa_next_free_sgpr {sgpr}
  .amdhsa_accum_offset {acc}
  .amdhsa_group_segment_fixed_size 0
  .amdhsa_kernarg_size 96
  .amdhsa_user_sgpr_count 2
  .amdhsa_user_sgpr_kernarg_segment_ptr 1
  .amdhsa_system_sgpr_workgroup_id_x 1
.end_amdhsa_kernel
"""
```

```python
from asmlib import *
from common import *
from gemm import VMQ

ATT_LDS = 65536 + 8192

def attn_role(a, V, S, *, vlane, s_wave, s_unit, WSP, T=None, ostore_flags="", lag=4, pre_wait=None):
    tmp = V.alloc("atmp", 4)
    st = S.alloc("ast", 6)
    s_head = S.alloc("head"); s_mb = S.alloc("amb"); s_ko = S.alloc("ko"); s_m0 = S.alloc("am0"); s_cnt = S.alloc("acnt")
    s_msk = S.alloc("amsk", 2, 2)
    qf = V.alloc("qf", 4, 4); negm = V.alloc("negm", 16, 4); Sb = V.alloc("S", 32, 4); P = V.alloc("P", 8, 4)
    O = V.alloc("O", 16, 4); kf = V.alloc("kf", 8, 4); vf = V.alloc("vf", 16, 4)
    vK = V.alloc("vK"); vV = V.alloc("vV"); vVp = V.alloc("vVp"); vl16 = V.alloc("vl16"); vVg = V.alloc("vVg")
    vinc = V.alloc("vinc"); vmsk = V.alloc("vmsk")
    CH = 16384
    a(f"s_and_b32 s{st}, s{s_unit}, 7")
    a(f"s_lshr_b32 s{st+1}, s{s_unit}, 3")
    a(f"s_lshl_b32 s{s_head}, s{st}, 2")
    a(f"s_lshr_b32 s{st+2}, s{st+1}, 3")
    a(f"s_add_u32 s{s_head}, s{s_head}, s{st+2}")
    a(f"s_and_b32 s{s_mb}, s{st+1}, 7")
    a(f"s_lshl_b32 s{s_mb}, s{s_mb}, 3")
    a(f"s_add_u32 s{s_mb}, s{s_mb}, s{s_wave}")
    a(f"v_lshlrev_b32 v{vl16}, 4, v{vlane}")
    a(f"s_lshl_b32 s{s_ko}, s{s_head}, 16")
    a(f"s_lshl_b32 s{s_m0}, s{s_wave}, 10")
    a(f"s_add_u32 s{s_ko}, s{s_ko}, s{s_m0}")
    a(f"s_add_u32 s{s_ko}, s{s_ko}, {WS_K}")
    if pre_wait: pre_wait(dict(s_head=s_head, s_mb=s_mb, tmp=tmp, st=st))
    def dma(c):
        a(f"s_add_u32 m0, s{s_m0}, {(c % 4) * CH}")
        a(f"s_add_u32 s{st+5}, s{s_ko}, {WS_V - WS_K}")
        a(f"buffer_load_dwordx4 v{vl16}, s[{WSP}:{WSP+3}], s{s_ko} offen lds")
        a(f"s_add_u32 m0, m0, 8192")
        a(f"s_add_u32 s{s_ko}, s{s_ko}, 8192")
        a(f"buffer_load_dwordx4 v{vl16}, s[{WSP}:{WSP+3}], s{st+5} offen lds")
    dma(0)
    a(f"s_lshl_b32 s{st}, s{s_head}, 6")
    a(f"s_add_u32 s{st}, s{st}, s{s_mb}")
    a(f"s_lshl_b32 s{st}, s{st}, 10")
    a(f"buffer_load_dwordx4 v[{qf}:{qf+3}], v{vl16}, s[{WSP}:{WSP+3}], s{st} offen")
    dma(1)
    dma(2)
    for r in range(4):
        a(f"v_mov_b32 v{vf+r}, 0x3f803f80")
    a(f"s_add_u32 s{st}, s{s_m0}, 65536")
    a(f"v_add_u32 v{tmp}, s{st}, v{vl16}")
    a(f"ds_write_b128 v{tmp}, v[{vf}:{vf+3}]")
    a(f"v_and_b32 v{tmp}, 31, v{vlane}")
    a(f"v_lshrrev_b32 v{tmp+1}, 5, v{vlane}")
    a(f"v_lshlrev_b32 v{vVg}, 8, v{tmp+1}")
    a(f"v_lshl_add_u32 v{vVg}, v{tmp}, 4, v{vVg}")
    a(f"v_cmp_gt_u32 vcc, 16, v{tmp}")
    a(f"v_add_u32 v{vV}, 8192, v{vVg}")
    a(f"v_mov_b32 v{tmp+2}, 65536")
    a(f"v_cndmask_b32 v{vV}, v{tmp+2}, v{vV}, vcc")
    a(f"v_mov_b32 v{tmp+2}, {CH}")
    a(f"v_cndmask_b32 v{vinc}, 0, v{tmp+2}, vcc")
    a(f"v_mov_b32 v{tmp+2}, 0xffff")
    a(f"v_cndmask_b32 v{vmsk}, -1, v{tmp+2}, vcc")
    a(f"v_mov_b32 v{vK}, v{vl16}")
    a(f"s_mov_b32 s{s_msk}, 0x0000ffff")
    a(f"s_mov_b32 s{s_msk+1}, 0x0000ffff")
    for r in range(16):
        a(f"v_mov_b32 v{O+r}, 0")
    KF = lambda i: kf + 4 * (i % 2)
    VF = lambda i: vf + 8 * (i % 2)
    SS = lambda i: Sb + 16 * (i % 2)
    def readK(i):
        a(f"ds_read_b128 v[{KF(i)}:{KF(i)+3}], v{vK} offset:{(i % 8) * 1024}")
    def readV(i, prev=False):
        t = i % 8
        r = vVp if prev else vV
        a(f"ds_read_b128 v[{VF(i)}:{VF(i)+3}], v{r} offset:{t * 1024}")
        a(f"ds_read_b128 v[{VF(i)+4}:{VF(i)+7}], v{r} offset:{t * 1024 + 512}")
    def qk(i, c=None):
        cc = f"v[{negm}:{negm+15}]" if c is None else c
        a(f"v_mfma_f32_32x32x16_bf16 v[{SS(i)}:{SS(i)+15}], v[{KF(i)}:{KF(i)+3}], v[{qf}:{qf+3}], {cc}")
    def pv(i, t):
        a(f"v_mfma_f32_32x32x16_bf16 v[{O}:{O+15}], v[{VF(i)+4*t}:{VF(i)+4*t+3}], v[{P+4*t}:{P+4*t+3}], v[{O}:{O+15}]")
    def softmax_pv_simple(i):
        s = SS(i)
        E = lambda r: a(f"v_exp_f32 v{s+r}, v{s+r}")
        C = lambda p: a(f"v_cvt_pk_bf16_f32 v{P+p}, v{s+2*p}, v{s+2*p+1}")
        E(0); E(1); E(2); C(0); E(3); E(4); C(1); E(5); E(6); C(2); E(7); E(8); C(3); E(9); E(10)
        pv(i, 0)
        C(4); E(11); E(12); C(5); E(13); E(14); C(6); E(15)
        a("s_nop 0")
        C(7)
        a("s_nop 1")
        pv(i, 1)
    def maxcalc(src, dst):
        a(f"v_max3_f32 v{dst}, v{src}, v{src+1}, v{src+2}")
        for r in range(3, 15, 2):
            a(f"v_max3_f32 v{dst}, v{dst}, v{src+r}, v{src+r+1}")
        a(f"v_max_f32 v{dst}, v{dst}, v{src+15}")
    def set_negm(mreg):
        a(f"v_mov_b32 v{tmp+1}, v{mreg}")
        a("s_nop 1")
        a(f"v_permlane32_swap_b32 v{tmp+1}, v{mreg}")
        a(f"v_max_f32 v{mreg}, v{mreg}, v{tmp+1}")
        for r in range(16):
            a(f"v_sub_f32 v{negm+r}, 0, v{mreg}")
    a("s_waitcnt vmcnt(4) lgkmcnt(0)")
    a("s_barrier")
    if T: T.stamp()
    readK(0); readK(1); readV(0)
    a("s_waitcnt lgkmcnt(3)")
    qk(0, "0")
    a("s_nop 15")
    maxcalc(SS(0), tmp)
    set_negm(tmp)
    a("s_nop 1")
    qk(0)
    a("s_nop 7")
    a("s_nop 3")
    pend = [None]
    def iteration(i, first_in_body=False, last=63, extra=None):
        s_ = SS(i); sp = SS(i - 1)
        E = lambda r: a(f"v_exp_f32 v{s_+r}, v{s_+r}")
        C = lambda p: a(f"v_cvt_pk_bf16_f32 v{P+p}, v{s_+2*p}, v{s_+2*p+1}")
        Cp = lambda p: a(f"v_cvt_pk_bf16_f32 v{P+p}, v{sp+2*p}, v{sp+2*p+1}")
        hasK = i + 2 <= last; hasV = i + 1 <= last
        nspill = lag // 2
        ev = {}
        def at(e, f): ev.setdefault(e, []).append(f)
        for p in range(8):
            e = 2 * p + 1 + lag
            if e < 16: at(e, lambda p=p: C(p))
            elif i > 0: at(e - 16, lambda p=p: Cp(p))
        eq = max(2 * 7 + 1 + lag - 16, 0)
        def do_qk():
            a("s_waitcnt lgkmcnt(0)")
            if i + 1 <= last: qk(i + 1)
        at(eq, do_qk)
        def do_pv1():
            if i > 0: pv(i - 1, 1)
            if hasV: readV(i + 1, prev=first_in_body)
            if hasK: readK(i + 2)
        at(eq + 3, do_pv1)
        at(min(2 * 3 + 1 + lag + 2, 15), lambda: pv(i, 0))
        if extra: at(eq + 6, extra)
        for e in range(16):
            E(e)
            for f in ev.get(e, []): f()
        def fin():
            a("s_nop 0")
            for p in range(8 - nspill, 8): C(p)
            a("s_nop 1")
            pv(i, 1)
        pend[0] = fin
    for i in range(6):
        iteration(i)
    s_slot = st + 4
    a(f"s_mov_b32 s{s_cnt}, 7")
    a(f"s_mov_b32 s{s_slot}, {3 * CH}")
    lab = a.newlabel("attn_loop")
    a.label(lab)
    a("s_waitcnt vmcnt(2)")
    a("s_barrier")
    a(f"v_mov_b32 v{vVp}, v{vV}")
    a(f"v_add_u32 v{vK}, {CH}, v{vK}")
    a(f"v_add_u32 v{vV}, v{vinc}, v{vV}")
    a(f"v_and_b32 v{vK}, 0xffff, v{vK}")
    a(f"v_and_b32 v{vV}, v{vmsk}, v{vV}")
    def dmaK():
        a(f"s_cmp_lt_u32 s{s_cnt}, 3")
        a(f"s_cselect_b32 s{s_ko}, 0x7f000000, s{s_ko}")
        a(f"s_add_u32 m0, s{s_m0}, s{s_slot}")
        a(f"s_add_u32 s{st+5}, s{s_ko}, {WS_V - WS_K}")
        a(f"buffer_load_dwordx4 v{vl16}, s[{WSP}:{WSP+3}], s{s_ko} offen lds")
    def dmaV():
        a(f"s_add_u32 m0, m0, 8192")
        a(f"s_add_u32 s{s_ko}, s{s_ko}, 8192")
        a(f"buffer_load_dwordx4 v{vl16}, s[{WSP}:{WSP+3}], s{st+5} offen lds")
        a(f"s_add_u32 s{s_slot}, s{s_slot}, {CH}")
        a(f"s_and_b32 s{s_slot}, s{s_slot}, 0xffff")
    for k in range(8):
        iteration(6 + k, first_in_body=(k == 0), extra={1: dmaK, 3: dmaV}.get(k))
    a(f"s_sub_u32 s{s_cnt}, s{s_cnt}, 1")
    a(f"s_cmp_lg_u32 s{s_cnt}, 0")
    a(f"s_cbranch_scc1 {lab}")
    iteration(62); iteration(63)
    pend[0]()
    if T: T.stamp()
    lok = a.newlabel("attn_ok")
    a("s_nop 15")
    a(f"v_mov_b32 v{tmp+1}, {hexf(2.0**60)}")
    a(f"v_cmp_nlt_f32 vcc, v{O+8}, v{tmp+1}")
    a("s_nop 1")
    a("s_cmp_eq_u64 vcc, 0")
    a(f"s_cbranch_scc1 {lok}")
    a(f"s_lshl_b32 s{st}, s{s_head}, 16")
    a(f"s_add_u32 s{st}, s{st}, {WS_K}")
    a(f"s_mov_b32 s{s_cnt}, 64")
    a(f"v_mov_b32 v{tmp}, 0xff800000")
    lm = a.newlabel("attn_fbmax")
    a.label(lm)
    a(f"buffer_load_dwordx4 v[{KF(0)}:{KF(0)+3}], v{vl16}, s[{WSP}:{WSP+3}], s{st} offen")
    a(f"s_add_u32 s{st}, s{st}, 1024")
    a("s_waitcnt vmcnt(0)")
    qk(0, "0")
    a("s_nop 15")
    maxcalc(SS(0), tmp + 2)
    a(f"v_max_f32 v{tmp}, v{tmp}, v{tmp+2}")
    a(f"s_sub_u32 s{s_cnt}, s{s_cnt}, 1")
    a(f"s_cmp_lg_u32 s{s_cnt}, 0")
    a(f"s_cbranch_scc1 {lm}")
    set_negm(tmp)
    for r in range(16):
        a(f"v_mov_b32 v{O+r}, 0")
    a(f"s_lshl_b32 s{st}, s{s_head}, 16")
    a(f"s_add_u32 s{st}, s{st}, {WS_K}")
    a(f"s_mov_b32 s{s_cnt}, 64")
    lf = a.newlabel("attn_fb")
    a.label(lf)
    a(f"s_add_u32 s{st+1}, s{st}, {WS_V - WS_K}")
    a(f"buffer_load_dwordx4 v[{KF(0)}:{KF(0)+3}], v{vl16}, s[{WSP}:{WSP+3}], s{st} offen")
    a(f"s_mov_b64 exec, s[{s_msk}:{s_msk+1}]")
    a(f"buffer_load_dwordx4 v[{VF(0)}:{VF(0)+3}], v{vVg}, s[{WSP}:{WSP+3}], s{st+1} offen")
    a(f"buffer_load_dwordx4 v[{VF(0)+4}:{VF(0)+7}], v{vVg}, s[{WSP}:{WSP+3}], s{st+1} offen offset:512")
    a(f"s_mov_b64 exec, -1")
    a(f"s_add_u32 s{st}, s{st}, 1024")
    a("s_waitcnt vmcnt(0)")
    qk(0)
    a("s_nop 15")
    softmax_pv_simple(0)
    a("s_nop 7")
    a(f"s_sub_u32 s{s_cnt}, s{s_cnt}, 1")
    a(f"s_cmp_lg_u32 s{s_cnt}, 0")
    a(f"s_cbranch_scc1 {lf}")
    a("s_nop 15")
    a.label(lok)
    a(f"v_rcp_f32 v{tmp}, v{O+8}")
    a(f"s_lshl_b32 s{st}, s{s_mb}, 5")
    a(f"s_add_u32 s{st}, s{st}, s{s_head}")
    a(f"s_lshl_b32 s{st}, s{st}, 10")
    a(f"s_add_u32 s{st}, s{st}, {WS_O}")
    for r in range(8):
        a(f"v_mul_f32 v{O+r}, v{O+r}, v{tmp}")
    pack8(a, O, P)
    a(f"buffer_store_dwordx4 v[{P}:{P+3}], v{vl16}, s[{WSP}:{WSP+3}], s{st} offen {ostore_flags}".rstrip())
    return dict(s_mb=s_mb, s_head=s_head, tmp=tmp, st=st)

def gen_attn(a, name="attn_kernel", stamps=False, prio=False, lag=4):
    kernel_header(a, name)
    V = Regs(1, 128, 'v'); S = Regs(20, 60, 's')
    end = a.newlabel("at_end")
    a("s_cmp_ge_u32 s2, 256")
    a(f"s_cbranch_scc1 {end}")
    a("s_load_dwordx2 s[4:5], s[0:1], 88")
    T = Stamps(a, 60, 16, stamps)
    T.stamp()
    T.rstamp()
    vlane = V.alloc("lane"); s_wave = S.alloc("wave")
    a(f"v_and_b32 v{vlane}, 63, v0")
    a(f"v_lshrrev_b32 v2, 6, v0")
    a("s_nop 0")
    a(f"v_readfirstlane_b32 s{s_wave}, v2")
    a("s_waitcnt lgkmcnt(0)")
    WSP = 16
    srd(a, WSP, 4, WS_SIZE)
    if prio:
        lp = a.newlabel("prio")
        a(f"s_cmp_lt_u32 s{s_wave}, 4")
        a(f"s_cbranch_scc1 {lp}")
        a("s_setprio 1")
        a.label(lp)
    r = attn_role(a, V, S, vlane=vlane, s_wave=s_wave, s_unit=2, WSP=WSP, T=T, lag=lag)
    T.stamp()
    T.rstamp()
    T.store(WSP, r['tmp'], r['st'], s_wave, slot=1)
    a.label(end)
    a("s_endpgm")
    return dict(name=name, vgpr=V.high, sgpr=100, grid=256, block=512, lds=ATT_LDS)
```

```python
from asmlib import *
from common import *
from gemm import *

RING = 5 * 16384
def exchange_wk(a, g, R, tmp, stmp, vl16, s_wave, s_wk, acc=None, base=0):
    acc = g.acc if acc is None else acc
    l1 = a.newlabel("xw1"); l2 = a.newlabel("xwd")
    a(f"s_lshl_b32 s{stmp}, s{s_wave}, 11")
    a(f"v_add_u32 v{tmp}, s{stmp}, v{vl16}")
    a(f"v_xor_b32 v{tmp+1}, {4 * 2048}, v{tmp}")
    a(f"s_cmp_eq_u32 s{s_wk}, 1")
    a(f"s_cbranch_scc1 {l1}")
    for (send, keep, lab) in ((8, 0, None), (0, 8, l1)):
        if lab: a.label(lab)
        a(f"ds_write_b128 v{tmp}, v[{acc+send}:{acc+send+3}] offset:{base}")
        a(f"ds_write_b128 v{tmp}, v[{acc+send+4}:{acc+send+7}] offset:{base+1024}")
        a("s_waitcnt lgkmcnt(0)")
        a("s_barrier")
        a(f"ds_read_b128 v[{R}:{R+3}], v{tmp+1} offset:{base}")
        a(f"ds_read_b128 v[{R+4}:{R+7}], v{tmp+1} offset:{base+1024}")
        a("s_waitcnt lgkmcnt(0)")
        for r in range(8):
            a(f"v_add_f32 v{R+r}, v{R+r}, v{acc+keep+r}")
        if not lab: a(f"s_branch {l2}")
    a.label(l2)

def unpack8(a, src4, dst8):
    for i in range(4):
        a(f"v_lshlrev_b32 v{dst8+2*i}, 16, v{src4+i}")
        a(f"v_and_b32 v{dst8+2*i+1}, 0xffff0000, v{src4+i}")

def halves_sum(a, regs, tmps):
    for r, t in zip(regs, tmps): a(f"v_mov_b32 v{t}, v{r}")
    a("s_nop 1")
    for r, t in zip(regs, tmps): a(f"v_permlane32_swap_b32 v{t}, v{r}")
    for r, t in zip(regs, tmps): a(f"v_add_f32 v{r}, v{r}, v{t}")

class Ctx:
    pass

def tile64_coords(a, C, s_unit):
    st = C.st
    a(f"s_and_b32 s{st}, s{s_unit}, 7")
    a(f"s_lshr_b32 s{st+1}, s{s_unit}, 3")
    a(f"s_lshl_b32 s{C.s_mt}, s{st}, 2")
    a(f"s_and_b32 s{st+2}, s{st+1}, 3")
    a(f"s_add_u32 s{C.s_mt}, s{C.s_mt}, s{st+2}")
    a(f"s_lshr_b32 s{C.s_nt}, s{st+1}, 2")

def common_ctx(a, V, S, vlane, s_wave):
    C = Ctx()
    C.vlane = vlane; C.s_wave = s_wave
    C.tmp = V.alloc("btmp", 8); C.st = S.alloc("bst", 6)
    C.vl16 = V.alloc("bl16"); C.vh = V.alloc("bh"); C.vl32 = V.alloc("bl32")
    C.s_wn = S.alloc("bwn"); C.s_wm = S.alloc("bwm"); C.s_wk = S.alloc("bwk")
    C.s_mt = S.alloc("bmt"); C.s_nt = S.alloc("bnt"); C.s_m0 = S.alloc("bm0"); C.s_n0 = S.alloc("bn0"); C.s_cnt = S.alloc("bcnt")
    C.s_mbg = S.alloc("bmbg"); C.s_kb = S.alloc("bkb")
    a(f"v_lshlrev_b32 v{C.vl16}, 4, v{vlane}")
    a(f"v_lshrrev_b32 v{C.vh}, 5, v{vlane}")
    a(f"v_and_b32 v{C.vl32}, 31, v{vlane}")
    return C

def waves222(a, C):
    a(f"s_and_b32 s{C.s_wn}, s{C.s_wave}, 1")
    a(f"s_bfe_u32 s{C.s_wm}, s{C.s_wave}, 0x10001")
    a(f"s_lshr_b32 s{C.s_wk}, s{C.s_wave}, 2")

def role_g3(a, V, S, C, s_unit, SR, store_flags="", publish=None, T=None):
    vm, sm = V.mark(), S.mark()
    vmq = VMQ(); st = C.st; tmp = C.tmp
    tile64_coords(a, C, s_unit); waves222(a, C)
    a(f"s_lshl_b32 s{C.s_m0}, s{C.s_mt}, 1")
    a(f"s_lshl_b32 s{C.s_n0}, s{C.s_nt}, 7")
    g = Gemm(a, V, S, vmq, name="g3", nw=8, TN=64, TM=64, wn=2, wm=2, wk=2, KC=64, K=512, slots=5, xmode='shift', korder='perm')
    g.alloc()
    g.setup(C.vlane, C.s_wave, tmp, st, kbtot=32, wstride=1024, s_m0=C.s_m0, s_n0=C.s_n0, s_wn=C.s_wn, s_wm=C.s_wm, s_wk=C.s_wk)
    a(f"s_mov_b32 s{g.s_xo}, {WS_H}")
    xr = V.alloc("xr", 4, 2); gw = V.alloc("gw", 4, 2); R = V.alloc("R", 8, 4); X = V.alloc("X", 8, 4); G = V.alloc("G", 8, 4)
    pk = V.alloc("pk", 4, 4); sv = V.alloc("sv", 4, 4)
    a(f"s_lshl_b32 s{C.s_mbg}, s{C.s_mt}, 1")
    a(f"s_add_u32 s{C.s_mbg}, s{C.s_mbg}, s{C.s_wm}")
    a(f"s_lshl_b32 s{C.s_kb}, s{C.s_nt}, 2")
    a(f"s_lshl_b32 s{st}, s{C.s_wn}, 1")
    a(f"s_add_u32 s{C.s_kb}, s{C.s_kb}, s{st}")
    a(f"s_add_u32 s{C.s_kb}, s{C.s_kb}, s{C.s_wk}")
    a(f"s_lshl_b32 s{st}, s{C.s_kb}, 5")
    a(f"s_lshl_b32 s{st+1}, s{C.s_mbg}, 15")
    a(f"s_add_u32 s{st+1}, s{st+1}, s{st}")
    a(f"v_lshlrev_b32 v{tmp}, 3, v{C.vh}")
    a(f"v_lshl_add_u32 v{tmp+1}, v{C.vl32}, 10, v{tmp}")
    a(f"buffer_load_dwordx2 v[{xr}:{xr+1}], v{tmp+1}, s[{SR['X']}:{SR['X']+3}], s{st+1} offen")
    a(f"buffer_load_dwordx2 v[{xr+2}:{xr+3}], v{tmp+1}, s[{SR['X']}:{SR['X']+3}], s{st+1} offen offset:16")
    a(f"buffer_load_dwordx2 v[{gw}:{gw+1}], v{tmp}, s[{SR['GW']}:{SR['GW']+3}], s{st} offen")
    a(f"buffer_load_dwordx2 v[{gw+2}:{gw+3}], v{tmp}, s[{SR['GW']}:{SR['GW']+3}], s{st} offen offset:16")
    for _ in range(4): vmq.issue('epi')
    for s in range(3):
        g.issue_x(s, SR['WS']); g.issue_w(s, SR['W2'])
    g.setup_reads(); g.zero_acc()
    g.mainloop(SR['WS'], SR['W2'], issued=3, max_issue=1, issue0=1, T=T)
    a("s_nop 7")
    a("s_barrier")
    exchange_wk(a, g, R, tmp, st, C.vl16, C.s_wave, C.s_wk)
    unpack8(a, xr, X); unpack8(a, gw, G)
    for r in range(8): a(f"v_add_f32 v{R+r}, v{R+r}, v{X+r}")
    pack8(a, R, pk)
    a(f"s_lshl_b32 s{st}, s{C.s_mbg}, 5")
    a(f"s_add_u32 s{st}, s{st}, s{C.s_kb}")
    a(f"s_lshl_b32 s{st}, s{st}, 10")
    a(f"s_add_u32 s{st}, s{st}, {WS_X1}")
    a(f"buffer_store_dwordx4 v[{pk}:{pk+3}], v{C.vl16}, s[{SR['WS']}:{SR['WS']+3}], s{st} offen {store_flags}".rstrip())
    unpack8(a, pk, R)
    a(f"v_add_f32 v{sv}, v{R}, v{R+1}")
    a(f"v_mul_f32 v{sv+1}, v{R}, v{R}")
    a(f"v_mul_f32 v{sv+2}, v{X}, v{G}")
    a(f"v_mov_b32 v{sv+3}, 0")
    for r in range(1, 8):
        if r >= 2: a(f"v_add_f32 v{sv}, v{sv}, v{R+r}")
        a(f"v_fmac_f32 v{sv+1}, v{R+r}, v{R+r}")
        a(f"v_fmac_f32 v{sv+2}, v{X+r}, v{G+r}")
    halves_sum(a, [sv, sv + 1, sv + 2], [tmp + 2, tmp + 3, tmp + 4])
    a(f"s_lshl_b32 s{st}, s{C.s_wk}, 1")
    a(f"s_add_u32 s{st}, s{st}, s{C.s_wn}")
    a(f"s_lshl_b32 s{st+1}, s{st}, 10")
    a(f"s_lshl_b32 s{st+2}, s{C.s_wm}, 9")
    a(f"s_add_u32 s{st+1}, s{st+1}, s{st+2}")
    a(f"v_lshlrev_b32 v{tmp}, 4, v{C.vl32}")
    a(f"v_add_u32 v{tmp+1}, s{st+1}, v{tmp}")
    a(f"ds_write_b128 v{tmp+1}, v[{sv}:{sv+3}] offset:16384")
    a("s_waitcnt lgkmcnt(0)")
    a("s_barrier")
    lskip = a.newlabel("g3_nost")
    a(f"s_cmp_lg_u32 s{st}, 0")
    a(f"s_cbranch_scc1 {lskip}")
    a(f"v_add_u32 v{tmp+1}, s{st+2}, v{tmp}")
    a(f"ds_read_b128 v[{R}:{R+3}], v{tmp+1} offset:{16384+1024}")
    a(f"ds_read_b128 v[{R+4}:{R+7}], v{tmp+1} offset:{16384+2048}")
    a(f"ds_read_b128 v[{X}:{X+3}], v{tmp+1} offset:{16384+3072}")
    a("s_waitcnt lgkmcnt(0)")
    for c in range(3):
        a(f"v_add_f32 v{sv+c}, v{sv+c}, v{R+c}")
        a(f"v_add_f32 v{R+4+c}, v{R+4+c}, v{X+c}")
        a(f"v_add_f32 v{sv+c}, v{sv+c}, v{R+4+c}")
    a(f"s_lshl_b32 s{st+1}, s{C.s_mbg}, 12")
    a(f"s_lshl_b32 s{st+2}, s{C.s_nt}, 4")
    a(f"s_add_u32 s{st+1}, s{st+1}, s{st+2}")
    a(f"s_add_u32 s{st+1}, s{st+1}, {WS_ST}")
    a(f"v_lshlrev_b32 v{tmp}, 7, v{C.vl32}")
    a("s_mov_b64 exec, 0xffffffff")
    a(f"buffer_store_dwordx4 v[{sv}:{sv+3}], v{tmp}, s[{SR['WS']}:{SR['WS']+3}], s{st+1} offen {store_flags}".rstrip())
    a("s_mov_b64 exec, -1")
    a.label(lskip)
    if publish: publish()
    V.release(vm); S.release(sm)

def load_rowstats(a, C, SR, s_mbg_expr_reg, dst16, flags=""):
    st = C.st; tmp = C.tmp
    a(f"s_lshl_b32 s{st}, s{s_mbg_expr_reg}, 12")
    a(f"s_add_u32 s{st}, s{st}, {WS_ST}")
    a(f"v_lshlrev_b32 v{tmp}, 6, v{C.vh}")
    a(f"v_lshl_add_u32 v{tmp}, v{C.vl32}, 7, v{tmp}")
    for p in range(4):
        a(f"buffer_load_dwordx4 v[{dst16+4*p}:{dst16+4*p+3}], v{tmp}, s[{SR['WS']}:{SR['WS']+3}], s{st} offen offset:{16*p} {flags}".rstrip())

def sum_rowstats(a, C, d, comps):
    for c in comps:
        a(f"v_add_f32 v{d+c}, v{d+c}, v{d+4+c}")
        a(f"v_add_f32 v{d+8+c}, v{d+8+c}, v{d+12+c}")
        a(f"v_add_f32 v{d+c}, v{d+c}, v{d+8+c}")
    halves_sum(a, [d + c for c in comps], [C.tmp + 2 + i for i in range(len(comps))])

def role_g4(a, V, S, C, s_unit, SR, lskip_label, store_flags="", wait_in=None, publish=None, T=None):
    vm, sm = V.mark(), S.mark()
    vmq = VMQ(); st = C.st; tmp = C.tmp
    a(f"s_lshr_b32 s{st+1}, s{s_unit}, 3")
    a(f"s_cmp_ge_u32 s{st+1}, 28")
    a(f"s_cbranch_scc1 {lskip_label}")
    a(f"s_and_b32 s{st}, s{s_unit}, 7")
    a(f"s_lshl_b32 s{C.s_mt}, s{st}, 1")
    a(f"s_and_b32 s{st+2}, s{st+1}, 1")
    a(f"s_add_u32 s{C.s_mt}, s{C.s_mt}, s{st+2}")
    a(f"s_lshr_b32 s{C.s_nt}, s{st+1}, 1")
    a(f"s_lshr_b32 s{C.s_wn}, s{C.s_wave}, 2")
    a(f"s_and_b32 s{C.s_wm}, s{C.s_wave}, 3")
    a(f"s_mov_b32 s{C.s_wk}, 0")
    a(f"s_lshl_b32 s{C.s_m0}, s{C.s_mt}, 2")
    a(f"s_lshl_b32 s{C.s_n0}, s{C.s_nt}, 8")
    g = Gemm(a, V, S, vmq, name="g4", nw=8, TN=128, TM=128, wn=2, wm=4, wk=1, KC=32, K=512, slots=5, xmode='frag', korder='perm')
    g.alloc()
    g.setup(C.vlane, C.s_wave, tmp, st, kbtot=32, wstride=3584, s_m0=C.s_m0, s_n0=C.s_n0, s_wn=C.s_wn, s_wm=C.s_wm, s_wk=C.s_wk)
    a(f"s_mov_b32 s{g.s_xo}, {WS_X1}")
    rs = V.alloc("rs", 16, 4); cp = V.alloc("cp", 8, 4); pk = V.alloc("pk", 4, 4); vk1 = V.alloc("vk1"); s_k2 = S.alloc("k2")
    a(f"s_add_u32 s{C.s_mbg}, s{C.s_m0}, s{C.s_wm}")
    a(f"s_lshl_b32 s{st}, s{C.s_nt}, 9")
    a(f"s_lshl_b32 s{st+1}, s{C.s_wn}, 8")
    a(f"s_add_u32 s{st}, s{st}, s{st+1}")
    a(f"s_add_u32 s{st}, s{st}, {WS_CS3}")
    a(f"v_lshlrev_b32 v{tmp}, 2, v{C.vlane}")
    for p in range(8):
        a(f"buffer_load_dword v{cp+p}, v{tmp}, s[{SR['WS']}:{SR['WS']+3}], s{st} offen")
        vmq.issue('cp')
        if p < 7: a(f"s_add_u32 s{st}, s{st}, {1792*4}")
    NPRE = 3
    for s in range(NPRE):
        g.issue_w(s, SR['W3'])
    if wait_in: wait_in(vmq)
    load_rowstats(a, C, SR, C.s_mbg, rs)
    for _ in range(4): vmq.issue('rs')
    for s in range(NPRE):
        g.issue_x(s, SR['WS'])
    g.setup_reads(); g.zero_acc()
    a(f"v_mov_b32 v{vk1}, {hexf(GK1)}")
    a(f"s_mov_b32 s{s_k2}, {hexf(GK2)}")
    g.mainloop(SR['WS'], SR['W3'], issued=NPRE, max_issue=1, issue0=1, T=T)
    for p in range(1, 8): a(f"v_add_f32 v{cp}, v{cp}, v{cp+p}")
    a("s_barrier")
    a(f"s_lshl_b32 s{st}, s{C.s_wave}, 8")
    a(f"v_lshlrev_b32 v{tmp}, 2, v{C.vlane}")
    a(f"v_add_u32 v{tmp}, s{st}, v{tmp}")
    a(f"ds_write_b32 v{tmp}, v{cp}")
    a(f"v_lshlrev_b32 v{tmp+1}, 4, v{C.vh}")
    a(f"v_add_u32 v{tmp+1}, s{st}, v{tmp+1}")
    sum_rowstats(a, C, rs, [0, 1])
    mean = rs; rstd = rs + 1
    a(f"v_mul_f32 v{mean}, {hexf(1/512)}, v{rs}")
    a(f"v_mul_f32 v{rs+1}, {hexf(1/512)}, v{rs+1}")
    a(f"v_fma_f32 v{rs+1}, -v{mean}, v{mean}, v{rs+1}")
    a(f"v_max_f32 v{rs+1}, 0, v{rs+1}")
    a(f"v_add_f32 v{rs+1}, {hexf(1e-5)}, v{rs+1}")
    a(f"v_rsq_f32 v{rstd}, v{rs+1}")
    a("s_waitcnt lgkmcnt(0)")
    csr = g.wf
    scr = g.xf if g.nbuf * g.bf * 4 >= 8 else None
    a(f"s_mul_i32 s{st}, s{C.s_mbg}, 112")
    a(f"s_lshl_b32 s{st+1}, s{C.s_nt}, 3")
    a(f"s_add_u32 s{st}, s{st}, s{st+1}")
    a(f"s_lshl_b32 s{st+1}, s{C.s_wn}, 2")
    a(f"s_add_u32 s{st}, s{st}, s{st+1}")
    a(f"s_lshl_b32 s{st}, s{st}, 10")
    a(f"s_add_u32 s{st}, s{st}, {WS_H3}")
    for i in range(2):
        for aa in range(4):
            a(f"ds_read_b128 v[{csr+4*aa}:{csr+4*aa+3}], v{tmp+1} offset:{i*128 + aa*32}")
        a("s_waitcnt lgkmcnt(0)")
        c = g.accreg(i, 0)
        for r in range(16): a(f"v_fma_f32 v{c+r}, -v{mean}, v{csr+r}, v{c+r}")
        for r in range(16): a(f"v_mul_f32 v{c+r}, v{c+r}, v{rstd}")
        gelu_vec(a, [c + r for r in range(16)], [csr + r for r in range(16)], vk1, s_k2)
        for t in range(2):
            pp = pk if t == 0 else cp
            pack8(a, c + 8 * t, pp)
            a(f"buffer_store_dwordx4 v[{pp}:{pp+3}], v{C.vl16}, s[{SR['WS']}:{SR['WS']+3}], s{st} offen offset:{(2*i+t)*1024} {store_flags}".rstrip())
        a("s_nop 1")
    if publish: publish()
    V.release(vm); S.release(sm)

def role_g5(a, V, S, C, s_unit, SR, wait_h3=None, wait_o=None, T=None):
    vm, sm = V.mark(), S.mark()
    vmq = VMQ(); st = C.st; tmp = C.tmp
    tile64_coords(a, C, s_unit); waves222(a, C)
    a(f"s_lshl_b32 s{C.s_m0}, s{C.s_mt}, 1")
    a(f"s_lshl_b32 s{C.s_n0}, s{C.s_nt}, 7")
    a(f"s_add_u32 s{C.s_mbg}, s{C.s_m0}, s{C.s_wm}")
    a(f"s_lshl_b32 s{C.s_kb}, s{C.s_nt}, 2")
    a(f"s_lshl_b32 s{st}, s{C.s_wn}, 1")
    a(f"s_add_u32 s{C.s_kb}, s{C.s_kb}, s{st}")
    a(f"s_add_u32 s{C.s_kb}, s{C.s_kb}, s{C.s_wk}")
    Rb = V.alloc("Rb", 8, 4); Ra = V.alloc("Ra", 8, 4); x1r = V.alloc("x1r", 4, 4); rs = V.alloc("rs", 16, 4)
    m2 = V.mark(); s2m = S.mark()
    g = Gemm(a, V, S, vmq, name="g5b", nw=8, TN=64, TM=64, wn=2, wm=2, wk=2, KC=64, K=1792, slots=5, xmode='frag', korder='perm')
    g.alloc()
    g.setup(C.vlane, C.s_wave, tmp, st, kbtot=112, wstride=1024, s_m0=C.s_m0, s_n0=C.s_n0, s_wn=C.s_wn, s_wm=C.s_wm, s_wk=C.s_wk)
    a(f"s_mov_b32 s{g.s_xo}, {WS_H3}")
    NPRE = 3
    for s in range(NPRE): g.issue_w(s, SR['W4'])
    if wait_h3: wait_h3(vmq)
    a(f"s_lshl_b32 s{st}, s{C.s_mbg}, 5")
    a(f"s_add_u32 s{st}, s{st}, s{C.s_kb}")
    a(f"s_lshl_b32 s{st}, s{st}, 10")
    a(f"s_add_u32 s{st}, s{st}, {WS_X1}")
    a(f"buffer_load_dwordx4 v[{x1r}:{x1r+3}], v{C.vl16}, s[{SR['WS']}:{SR['WS']+3}], s{st} offen")
    vmq.issue('x1')
    load_rowstats(a, C, SR, C.s_mbg, rs)
    for _ in range(4): vmq.issue('rs')
    for s in range(NPRE): g.issue_x(s, SR['WS'])
    g.setup_reads(); g.zero_acc()
    g.mainloop(SR['WS'], SR['W4'], issued=NPRE, max_issue=1, issue0=1, T=T)
    a("s_nop 7")
    a("s_barrier")
    exchange_wk(a, g, Rb, tmp, st, C.vl16, C.s_wave, C.s_wk)
    V.release(m2); S.release(s2m)
    g2 = Gemm(a, V, S, vmq, name="g5a", nw=8, TN=64, TM=64, wn=2, wm=2, wk=2, KC=64, K=512, slots=5, xmode='frag', korder='perm')
    g2.alloc()
    g2.setup(C.vlane, C.s_wave, tmp, st, kbtot=32, wstride=1024, s_m0=C.s_m0, s_n0=C.s_n0, s_wn=C.s_wn, s_wm=C.s_wm, s_wk=C.s_wk)
    a(f"s_mov_b32 s{g2.s_xo}, {WS_O}")
    a("s_barrier")
    for s in range(5): g2.issue_w(s, SR['WO'])
    if wait_o: wait_o(vmq)
    for s in range(5): g2.issue_x(s, SR['WS'])
    g2.setup_reads(); g2.zero_acc()
    X = g2.xf if False else V.alloc("X", 8, 4)
    unpack8(a, x1r, X)
    for r in range(8): a(f"v_add_f32 v{Rb+r}, v{Rb+r}, v{X+r}")
    sum_rowstats(a, C, rs, [2])
    gt = rs + 2; og = rs + 3
    a(f"v_mul_f32 v{gt}, {hexf(-LOG2E)}, v{gt}")
    a(f"v_exp_f32 v{gt}, v{gt}")
    a("s_nop 0")
    a(f"v_add_f32 v{gt}, 1.0, v{gt}")
    a(f"v_rcp_f32 v{gt}, v{gt}")
    a("s_nop 0")
    a(f"v_sub_f32 v{og}, 1.0, v{gt}")
    for r in range(8): a(f"v_mul_f32 v{Rb+r}, v{Rb+r}, v{og}")
    g2.mainloop(SR['WS'], SR['WO'], issued=5, max_issue=1, T=None)
    a("s_nop 7")
    a("s_barrier")
    exchange_wk(a, g2, Ra, tmp, st, C.vl16, C.s_wave, C.s_wk)
    for r in range(8): a(f"v_fma_f32 v{Ra+r}, v{Ra+r}, v{gt}, v{Rb+r}")
    pack8(a, Ra, X)
    a("s_nop 1")
    a(f"v_permlane32_swap_b32 v{X}, v{X+2}")
    a(f"v_permlane32_swap_b32 v{X+1}, v{X+3}")
    a(f"s_lshl_b32 s{st}, s{C.s_kb}, 5")
    a(f"s_lshl_b32 s{st+1}, s{C.s_mbg}, 15")
    a(f"s_add_u32 s{st+1}, s{st+1}, s{st}")
    a(f"v_lshlrev_b32 v{tmp}, 4, v{C.vh}")
    a(f"v_lshl_add_u32 v{tmp}, v{C.vl32}, 10, v{tmp}")
    a(f"buffer_store_dwordx4 v[{X}:{X+3}], v{tmp}, s[{SR['OUT']}:{SR['OUT']+3}], s{st+1} offen")
    V.release(vm); S.release(sm)

def std_prologue(a, name, V, S, ngrid, T_enabled, label_only=False):
    if label_only: a.label(name)
    else: kernel_header(a, name)
    end = a.newlabel(name + "_end")
    a(f"s_cmp_ge_u32 s2, {ngrid}")
    a(f"s_cbranch_scc1 {end}")
    a("s_load_dwordx2 s[84:85], s[0:1], 0")
    a("s_load_dwordx2 s[86:87], s[0:1], 16")
    a("s_load_dwordx4 s[88:91], s[0:1], 40")
    a("s_load_dwordx4 s[92:95], s[0:1], 56")
    a("s_load_dwordx2 s[96:97], s[0:1], 72")
    a("s_load_dwordx2 s[98:99], s[0:1], 88")
    vlane = V.alloc("lane"); s_wave = S.alloc("wave")
    a(f"v_and_b32 v{vlane}, 63, v0")
    a(f"v_lshrrev_b32 v2, 6, v0")
    a("s_nop 0")
    a(f"v_readfirstlane_b32 s{s_wave}, v2")
    a("s_waitcnt lgkmcnt(0)")
    SR = dict(X=4, WO=8, W2=12, W3=16, W4=20, GW=24, OUT=28, WS=32)
    srd(a, SR['WS'], 98, WS_SIZE)
    srd(a, SR['X'], 84, 2048 * 1024)
    srd(a, SR['WO'], 86, 512 * 1024)
    srd(a, SR['W2'], 88, 512 * 1024)
    srd(a, SR['W3'], 90, 512 * 3584)
    srd(a, SR['W4'], 92, 1792 * 1024)
    srd(a, SR['GW'], 94, 1024)
    srd(a, SR['OUT'], 96, 2048 * 1024)
    return end, vlane, s_wave, SR

def gen_single(which):
    def f(a):
        name = which + "_kernel"
        V = Regs(1, 128, 'v'); S = Regs(36, 84, 's')
        end, vlane, s_wave, SR = std_prologue(a, name, V, S, 256, False)
        C = common_ctx(a, V, S, vlane, s_wave)
        if which == 'g3': role_g3(a, V, S, C, 2, SR)
        elif which == 'g4': role_g4(a, V, S, C, 2, SR, end)
        elif which == 'g5': role_g5(a, V, S, C, 2, SR)
        a.label(end)
        a("s_endpgm")
        return dict(name=name, vgpr=V.high, sgpr=100, grid=256, block=512, lds=RING)
    return f
```

```python
import sys
from asmlib import *
import importlib
def build(kernels, out):
    a = Asm()
    infos = []
    for k in kernels:
        infos.append(k(a))
    hdr = open('gated_mix__mha_block__mixer_s_mlp__prompt.s.ref').read().split("; Override launch")[0]
    txt = hdr
    for i in infos:
        txt += f"; @launch kernel={i['name']} grid=({i['grid']},1,1) block=({i['block']},1,1) lds={i['lds']}\n"
    txt += '.amdgcn_target "amdgcn-amd-amdhsa--gfx950"\n.text\n' + a.text()
    txt += '.section .rodata,"a"\n'
    seen = set()
    for i in infos:
        if i['name'] in seen: continue
        seen.add(i['name'])
        txt += kernel_desc(i['name'], i['vgpr'], i['sgpr'])
    open(out, 'w').write(txt)
    for i in infos: print(i)
if __name__ == "__main__":
    from k1 import gen_k1
    build([lambda a: gen_k1(a, stamps=True)], "t1.s")
```

```python
from asmlib import *
from layout import *

def srd(a, d, base, nbytes):
    a(f"s_mov_b32 s{d}, s{base}")
    a(f"s_and_b32 s{d+1}, s{base+1}, 0xffff")
    a(f"s_mov_b32 s{d+2}, {nbytes:#x}")
    a(f"s_mov_b32 s{d+3}, 0x00020000")

def gelu(a, x, t0, t1, s_k1, s_k2):
    a(f"v_mul_f32 v{t0}, v{x}, v{x}")
    a(f"v_fma_f32 v{t0}, v{t0}, s{s_k2}, v{t1}")
    a(f"v_mul_f32 v{t0}, v{t0}, v{x}")
    a(f"v_exp_f32 v{t0}, v{t0}")
    a(f"s_nop 0")
    a(f"v_add_f32 v{t0}, 1.0, v{t0}")
    a(f"v_rcp_f32 v{t0}, v{t0}")
    a(f"s_nop 0")
    a(f"v_mul_f32 v{x}, v{x}, v{t0}")

def gelu_vec(a, xs, ts, vk1, s_k2):
    n = len(xs)
    assert len(ts) >= n and n >= 2
    for x, t in zip(xs, ts): a(f"v_mul_f32 v{t}, v{x}, v{x}")
    for x, t in zip(xs, ts): a(f"v_fma_f32 v{t}, v{t}, s{s_k2}, v{vk1}")
    for x, t in zip(xs, ts): a(f"v_mul_f32 v{t}, v{t}, v{x}")
    for x, t in zip(xs, ts): a(f"v_exp_f32 v{t}, v{t}")
    for x, t in zip(xs, ts): a(f"v_add_f32 v{t}, 1.0, v{t}")
    for x, t in zip(xs, ts): a(f"v_rcp_f32 v{t}, v{t}")
    for x, t in zip(xs, ts): a(f"v_mul_f32 v{x}, v{x}, v{t}")

def pack8(a, src, dst):
    for i in range(4):
        a(f"v_cvt_pk_bf16_f32 v{dst+i}, v{src+2*i}, v{src+2*i+1}")

WS_DBG = 30 * MB
class Stamps:
    def __init__(self, a, sbase, n, enabled):
        self.a = a; self.sbase = sbase; self.n = n; self.i = 0; self.enabled = enabled
    def stamp(self):
        if not self.enabled: return
        assert self.i < self.n
        self.a(f"s_memtime s[{self.sbase + 2*self.i}:{self.sbase + 2*self.i + 1}]")
        self.i += 1
    def rstamp(self):
        if not self.enabled: return
        assert self.i < self.n
        self.a(f"s_memrealtime s[{self.sbase + 2*self.i}:{self.sbase + 2*self.i + 1}]")
        self.i += 1
    def store(self, wsp, vtmp, stmp, s_wave, slot=0, s_id="s2"):
        if not self.enabled: return
        a = self.a
        l = a.newlabel("nostamp")
        a("s_waitcnt lgkmcnt(0)")
        a(f"s_lshl_b32 s{stmp}, {s_id}, 3")
        a(f"s_add_u32 s{stmp}, s{stmp}, s{s_wave}")
        a(f"s_lshl_b32 s{stmp}, s{stmp}, 6")
        a(f"s_add_u32 s{stmp}, s{stmp}, {WS_DBG + slot * 0x80000}")
        a(f"v_mov_b32 v{vtmp+1}, 0")
        a("s_mov_b64 exec, 1")
        for i in range(self.i):
            a(f"v_mov_b32 v{vtmp}, s{self.sbase + 2*i}")
            a(f"buffer_store_dword v{vtmp}, v{vtmp+1}, s[{wsp}:{wsp+3}], s{stmp} offen offset:{4*i}")
        a("s_mov_b64 exec, -1")
```

```python
from asmlib import *

class VMQ:
    def __init__(self):
        self.q = []
    def issue(self, tag):
        self.q.append(tag)
    def wait(self, a, tags):
        idx = -1
        for i, t in enumerate(self.q):
            if t in tags:
                idx = i
        if idx < 0:
            return
        n = len(self.q) - 1 - idx
        assert n <= 63
        a(f"s_waitcnt vmcnt({n})")
        self.q = self.q[idx + 1:]
    def drain(self, a):
        if self.q:
            a("s_waitcnt vmcnt(0)")
        self.q = []

class Gemm:
    def __init__(self, a, V, S, vmq, *, name, nw, TN, TM, wn, wm, wk, KC, K, slots, xmode, korder,
                 lds_base=0, PD=2, wmode='buf', rot=False, consumer_only=False):
        self.a = a; self.V = V; self.S = S; self.vmq = vmq; self.name = name
        self.nw, self.TN, self.TM, self.wn, self.wm, self.wk = nw, TN, TM, wn, wm, wk
        assert wn * wm * wk == nw
        self.KC, self.K, self.slots, self.xmode, self.korder = KC, K, slots, xmode, korder
        self.af = TN // 32 // wn
        self.bf = TM // 32 // wm
        self.nst = K // KC
        self.ks_stage = KC // 16
        self.ksw = self.ks_stage // wk
        self.PD = PD
        assert self.ksw >= PD
        self.nbuf = PD + 1
        self.xbytes = TM * KC * 2
        self.wbytes = KC * TN * 2
        self.stage_bytes = self.xbytes + self.wbytes
        self.nxi = self.xbytes // 1024 // nw
        self.nwi = self.wbytes // 1024 // nw
        assert self.nxi * 1024 * nw == self.xbytes and self.nwi * 1024 * nw == self.wbytes
        self.RB = TN * 2
        self.lds_base = lds_base
        self.lds_total = lds_base + slots * self.stage_bytes
        self.nwin = (self.lds_total + 65535) // 65536
        self.wmode = wmode
        self.rot = rot
        self.consumer_only = consumer_only
        if xmode == 'raw':
            assert KC == 64

    def alloc(self):
        V, S, n = self.V, self.S, self.name
        self.acc = V.alloc(n + "acc", self.af * self.bf * 16, 4)
        self.xf = V.alloc(n + "xf", self.nbuf * self.bf * 4, 4)
        self.wf = V.alloc(n + "wf", self.nbuf * self.af * 4, 4)
        nxa = (self.ksw if self.xmode == 'raw' else 1)
        self.xa = V.alloc(n + "xa", nxa * self.nwin)
        self.wa = V.alloc(n + "wa", self.af * self.nwin)
        if self.consumer_only:
            return
        nvar = 4 if self.xmode == 'shift' else 1
        self.xv = V.alloc(n + "xv", self.nxi * nvar)
        if self.wmode == 'buf':
            self.wv = V.alloc(n + "wv", self.nwi)
        else:
            self.wb = V.alloc(n + "wb", 2 * self.nwi, 2)
            self.wstepv = V.alloc(n + "wstep", self.nwi)
            self.wad = V.alloc(n + "wad", 2 * self.nwi, 2)
        self.s_xo = S.alloc(n + "xo")
        self.s_wo = S.alloc(n + "wo")
        self.s_m0x = S.alloc(n + "m0x")
        self.s_m0w = S.alloc(n + "m0w")

    def accreg(self, i, j):
        return self.acc + (i * self.bf + j) * 16

    def setup(self, vlane, s_wave, tmp, stmp, *, xstride=None, kbtot=None, wstride=None, s_m0=None, s_n0=None,
              s_wn=None, s_wm=None, s_wk=None, s_rot=None, wcustom=None):
        a = self.a
        t0, t1, t2, t3, t4, t5 = [tmp + i for i in range(6)]
        st = stmp
        a(f"v_and_b32 v{t0}, 31, v{vlane}")
        a(f"v_lshrrev_b32 v{t1}, 5, v{vlane}")
        if self.xmode == 'raw':
            for q in range(self.nxi):
                a(f"s_mul_i32 s{st}, s{s_wave}, {self.nxi * 8}")
                a(f"s_add_u32 s{st}, s{st}, {q * 8}")
                a(f"v_lshrrev_b32 v{t2}, 3, v{vlane}")
                a(f"v_add_u32 v{t2}, s{st}, v{t2}")
                a(f"v_bfe_u32 v{t3}, v{t2}, 1, 3")
                a(f"v_and_b32 v{t4}, 7, v{vlane}")
                a(f"v_xor_b32 v{t3}, v{t3}, v{t4}")
                a(f"v_add_u32 v{t2}, s{s_m0}, v{t2}")
                a(f"v_mul_u32_u24 v{t2}, {xstride}, v{t2}")
                a(f"v_lshl_add_u32 v{self.xv + q}, v{t3}, 4, v{t2}")
            self.xstep = self.KC * 2
        elif self.xmode == 'frag':
            for q in range(self.nxi):
                a(f"s_mul_i32 s{st}, s{s_wave}, {self.nxi}")
                if q:
                    a(f"s_add_u32 s{st}, s{st}, {q}")
                sh = self.ks_stage.bit_length() - 1
                assert 1 << sh == self.ks_stage
                a(f"s_lshr_b32 s{st+1}, s{st}, {sh}")
                a(f"s_and_b32 s{st}, s{st}, {self.ks_stage - 1}")
                a(f"s_add_u32 s{st+1}, s{st+1}, s{s_m0}")
                a(f"s_mul_i32 s{st+1}, s{st+1}, {kbtot}")
                a(f"s_add_u32 s{st}, s{st}, s{st+1}")
                a(f"s_lshl_b32 s{st}, s{st}, 10")
                a(f"v_lshlrev_b32 v{t2}, 4, v{vlane}")
                a(f"v_add_u32 v{self.xv + q}, s{st}, v{t2}")
            self.xstep = self.ks_stage * 1024
        elif self.xmode == 'shift':
            shifts = [-1, 1, -2, 2]
            for q in range(self.nxi):
                a(f"s_mul_i32 s{st}, s{s_wave}, {self.nxi}")
                if q:
                    a(f"s_add_u32 s{st}, s{st}, {q}")
                sh = self.ks_stage.bit_length() - 1
                a(f"s_lshr_b32 s{st+1}, s{st}, {sh}")
                a(f"s_and_b32 s{st}, s{st}, {self.ks_stage - 1}")
                a(f"s_add_u32 s{st+1}, s{st+1}, s{s_m0}")
                a(f"s_lshl_b32 s{st+1}, s{st+1}, 5")
                a(f"s_lshl_b32 s{st}, s{st}, 10")
                a(f"v_lshlrev_b32 v{t5}, 9, v{t1}")
                a(f"v_add_u32 v{t5}, s{st}, v{t5}")
                a(f"s_movk_i32 s{st+2}, 2048")
                a(f"s_mov_b32 s{st+3}, 0x7f000000")
                for g, s_ in enumerate(shifts):
                    a(f"v_add_u32 v{t2}, s{st+1}, v{t0}")
                    a(f"v_add_u32 v{t2}, {s_}, v{t2}")
                    a(f"v_lshrrev_b32 v{t3}, 5, v{t2}")
                    a(f"v_mul_u32_u24 v{t3}, {kbtot * 1024}, v{t3}")
                    a(f"v_and_b32 v{t4}, 31, v{t2}")
                    a(f"v_lshl_add_u32 v{t3}, v{t4}, 4, v{t3}")
                    a(f"v_add_u32 v{t3}, v{t3}, v{t5}")
                    a(f"v_cmp_gt_u32 vcc, s{st+2}, v{t2}")
                    a(f"v_mov_b32 v{t4}, s{st+3}")
                    a(f"s_nop 1")
                    a(f"v_cndmask_b32 v{self.xv + g * self.nxi + q}, v{t4}, v{t3}, vcc")
            self.xstep = self.ks_stage * 1024
        cpr = self.RB // 16
        rpi = 1024 // self.RB
        shc = cpr.bit_length() - 1
        for q in range(self.nwi):
            a(f"s_mul_i32 s{st}, s{s_wave}, {self.nwi * rpi}")
            a(f"s_add_u32 s{st}, s{st}, {q * rpi}")
            a(f"v_lshrrev_b32 v{t2}, {shc}, v{vlane}")
            a(f"v_add_u32 v{t2}, s{st}, v{t2}")
            if self.TN == 128:
                a(f"v_and_b32 v{t3}, 3, v{t2}")
            else:
                a(f"v_bfe_u32 v{t3}, v{t2}, 1, 1")
            a(f"v_lshlrev_b32 v{t3}, 2, v{t3}")
            a(f"v_and_b32 v{t4}, {cpr - 1}, v{vlane}")
            a(f"v_xor_b32 v{t3}, v{t3}, v{t4}")
            if self.wmode == 'buf':
                a(f"v_mul_u32_u24 v{t2}, {wstride}, v{t2}")
                a(f"v_lshl_add_u32 v{t2}, v{t3}, 4, v{t2}")
                a(f"v_add_u32 v{self.wv + q}, s{s_n0}, v{t2}")
            else:
                wcustom(q, t2, t3, t4, t5)
        self.wstride = wstride
        if self.rot:
            a(f"s_mov_b32 s{self.s_xo}, s{s_rot}")
            a(f"s_mov_b32 s{self.s_wo}, s{s_rot}")
            self.s_tmp_rot = self.S.alloc(self.name + "rt")
        else:
            a(f"s_mov_b32 s{self.s_xo}, 0")
            a(f"s_mov_b32 s{self.s_wo}, 0")
        a(f"s_mul_i32 s{self.s_m0x}, s{s_wave}, {self.nxi * 1024}")
        a(f"s_add_u32 s{self.s_m0x}, s{self.s_m0x}, {self.lds_base}")
        a(f"s_mul_i32 s{self.s_m0w}, s{s_wave}, {self.nwi * 1024}")
        a(f"s_add_u32 s{self.s_m0w}, s{self.s_m0w}, {self.lds_base + self.xbytes}")
        self._setup2 = (vlane, tmp, stmp, s_wn, s_wm, s_wk)

    def setup_reads(self):
        a = self.a
        vlane, tmp, st, s_wn, s_wm, s_wk = self._setup2
        t0, t1, t2, t3, t4, t5 = [tmp + i for i in range(6)]
        a(f"v_and_b32 v{t0}, 31, v{vlane}")
        a(f"v_lshrrev_b32 v{t1}, 5, v{vlane}")
        if self.xmode == 'raw':
            a(f"v_bfe_u32 v{t2}, v{t0}, 1, 3")
            a(f"s_mul_i32 s{st}, s{s_wm}, {self.bf * 32 * 128}")
            a(f"v_lshlrev_b32 v{t3}, 7, v{t0}")
            a(f"v_add_u32 v{t3}, s{st}, v{t3}")
            a(f"s_mul_i32 s{st+1}, s{s_wk}, {2 * self.ksw}")
            for ks in range(self.ksw):
                a(f"v_add_u32 v{t4}, s{st+1}, v{t1}")
                if ks:
                    a(f"v_add_u32 v{t4}, {2*ks}, v{t4}")
                a(f"v_xor_b32 v{t4}, v{t4}, v{t2}")
                a(f"v_lshl_add_u32 v{self.xa + ks * self.nwin}, v{t4}, 4, v{t3}")
                for w in range(1, self.nwin):
                    a(f"v_add_u32 v{self.xa + ks * self.nwin + w}, {65536 * w}, v{self.xa + ks * self.nwin}")
        else:
            a(f"s_mul_i32 s{st}, s{s_wm}, {self.bf * self.ks_stage * 1024}")
            a(f"s_mul_i32 s{st+1}, s{s_wk}, {self.ksw * 1024}")
            a(f"s_add_u32 s{st}, s{st}, s{st+1}")
            a(f"v_lshlrev_b32 v{t3}, 4, v{vlane}")
            a(f"v_add_u32 v{self.xa}, s{st}, v{t3}")
            for w in range(1, self.nwin):
                a(f"v_add_u32 v{self.xa + w}, {65536 * w}, v{self.xa}")
        a(f"v_bfe_u32 v{t2}, v{vlane}, 2, 2")
        a(f"v_and_b32 v{t3}, 3, v{vlane}")
        a(f"v_lshlrev_b32 v{t3}, 3, v{t3}")
        a(f"v_bfe_u32 v{t4}, v{vlane}, 4, 1")
        a(f"v_lshl_add_u32 v{t3}, v{t4}, 5, v{t3}")
        a(f"v_lshlrev_b32 v{t4}, {3 if self.korder == 'nat' else 2}, v{t1}")
        a(f"v_add_u32 v{t4}, v{t4}, v{t2}")
        a(f"s_mul_i32 s{st}, s{s_wk}, {16 * self.ksw}")
        a(f"v_add_u32 v{t4}, s{st}, v{t4}")
        a(f"v_mul_u32_u24 v{t4}, {self.RB}, v{t4}")
        a(f"v_add_u32 v{t3}, v{t3}, v{t4}")
        if self.TN == 64:
            a(f"v_lshrrev_b32 v{t2}, 1, v{t2}")
        else:
            assert self.TN == 128
        for i in range(self.af):
            a(f"s_mul_i32 s{st}, s{s_wn}, {self.af}")
            if i:
                a(f"s_add_u32 s{st}, s{st}, {i}")
            a(f"v_xor_b32 v{t4}, s{st}, v{t2}")
            a(f"v_lshl_add_u32 v{self.wa + i * self.nwin}, v{t4}, 6, v{t3}")
            for w in range(1, self.nwin):
                a(f"v_add_u32 v{self.wa + i * self.nwin + w}, {65536 * w}, v{self.wa + i * self.nwin}")

    def zero_acc(self):
        for r in range(self.af * self.bf * 16):
            self.a(f"v_mov_b32 v{self.acc + r}, 0")

    def issue_x(self, stage, srd, flags=""):
        a = self.a
        slot = stage % self.slots
        var = 0
        if self.xmode == 'shift':
            var = (stage * self.KC) // 128
        so = self.s_xo
        if self.rot:
            so = self.s_tmp_rot
            a(f"s_mul_i32 s{so}, s{self.s_xo}, {self.xstep}")
        for q in range(self.nxi):
            a(f"s_add_u32 m0, s{self.s_m0x}, {slot * self.stage_bytes + q * 1024}")
            a("s_nop 0")
            a(f"buffer_load_dwordx4 v{self.xv + var * self.nxi + q}, s[{srd}:{srd+3}], s{so} offen {flags} lds".replace("  ", " "))
            self.vmq.issue((self.name, 'x', stage))
        if self.rot:
            a(f"s_add_u32 s{self.s_xo}, s{self.s_xo}, 1")
            a(f"s_and_b32 s{self.s_xo}, s{self.s_xo}, {self.nst - 1}")
        else:
            a(f"s_add_u32 s{self.s_xo}, s{self.s_xo}, {self.xstep}")

    def issue_w(self, stage, srd):
        a = self.a
        slot = stage % self.slots
        if self.wmode == 'buf':
            so = self.s_wo
            if self.rot:
                so = self.s_tmp_rot
                a(f"s_mul_i32 s{so}, s{self.s_wo}, {self.KC * self.wstride}")
            for q in range(self.nwi):
                a(f"s_add_u32 m0, s{self.s_m0w}, {slot * self.stage_bytes + q * 1024}")
                a("s_nop 0")
                a(f"buffer_load_dwordx4 v{self.wv + q}, s[{srd}:{srd+3}], s{so} offen lds")
                self.vmq.issue((self.name, 'w', stage))
        else:
            assert self.rot
            for q in range(self.nwi):
                a(f"v_mad_u64_u32 v[{self.wad+2*q}:{self.wad+2*q+1}], vcc, v{self.wstepv+q}, s{self.s_wo}, v[{self.wb+2*q}:{self.wb+2*q+1}]")
            for q in range(self.nwi):
                a(f"s_add_u32 m0, s{self.s_m0w}, {slot * self.stage_bytes + q * 1024}")
                a("s_nop 0")
                a(f"global_load_lds_dwordx4 v[{self.wad+2*q}:{self.wad+2*q+1}], off")
                self.vmq.issue((self.name, 'w', stage))
        if self.rot:
            a(f"s_add_u32 s{self.s_wo}, s{self.s_wo}, 1")
            a(f"s_and_b32 s{self.s_wo}, s{self.s_wo}, {self.nst - 1}")
        else:
            a(f"s_add_u32 s{self.s_wo}, s{self.s_wo}, {self.KC * self.wstride}")

    def wait_stage(self, stage):
        self.vmq.wait(self.a, {(self.name, 'x', stage), (self.name, 'w', stage)})

    def _lds(self, basereg_first, off):
        return basereg_first + off // 65536, off % 65536

    def read_frags(self, n):
        a = self.a
        stage, ks = divmod(n, self.ksw)
        buf = n % self.nbuf
        slot = stage % self.slots
        sb = self.lds_base + slot * self.stage_bytes
        for j in range(self.bf):
            if self.xmode == 'raw':
                r, o = self._lds(self.xa + ks * self.nwin, sb + j * 32 * 128)
            else:
                r, o = self._lds(self.xa, sb + (j * self.ks_stage + ks) * 1024)
            d = self.xf + (buf * self.bf + j) * 4
            a(f"ds_read_b128 v[{d}:{d+3}], v{r} offset:{o}")
        for i in range(self.af):
            for jj in range(2):
                krow = 16 * ks + (4 * jj if self.korder == 'nat' else 8 * jj)
                r, o = self._lds(self.wa + i * self.nwin, sb + self.xbytes + krow * self.RB)
                d = self.wf + (buf * self.af + i) * 4 + 2 * jj
                a(f"ds_read_b64_tr_b16 v[{d}:{d+1}], v{r} offset:{o}")

    def mfmas(self, buf, swap):
        a = self.a
        for i in range(self.af):
            for j in range(self.bf):
                c = self.accreg(i, j)
                w = self.wf + (buf * self.af + i) * 4
                x = self.xf + (buf * self.bf + j) * 4
                A, B = (x, w) if swap[i] else (w, x)
                a(f"v_mfma_f32_32x32x16_bf16 v[{c}:{c+15}], v[{A}:{A+3}], v[{B}:{B+3}], v[{c}:{c+15}]")

    PRE = property(lambda self: self.slots - 1)

    def step_code(self, n, xsrd, wsrd, swap, hook, xflags):
        a = self.a
        nrd = self.bf + 2 * self.af
        total = self.nst * self.ksw
        m = n + self.PD
        dmas = []
        if m < total:
            if m % self.ksw == 0:
                sp = m // self.ksw
                self.wait_stage(sp)
                a("s_barrier")
                if self.T2: self.T2.stamp()
                lim = min(self.nst - 1, max(sp - 2, -1) + self.slots)
                while (not self.consumer_only) and self.next_dma <= lim and len(dmas) < self.max_issue:
                    dmas.append(self.next_dma); self.next_dma += 1
            self.read_frags(m)
        ahead = min(self.PD, total - 1 - n)
        a(f"s_waitcnt lgkmcnt({ahead * nrd})")
        self.mfmas(n % self.nbuf, swap)
        for d in dmas:
            if self.pre_dma: self.pre_dma(d)
            self.issue_x(d, xsrd, xflags)
            self.issue_w(d, wsrd)
        if hook:
            hook(n // self.ksw, n % self.ksw, n % self.nbuf)

    def prologue_stages(self):
        return min(self.slots, self.nst)

    def mainloop(self, xsrd, wsrd, swap=None, hook=None, loop=None, s_cnt=None, xflags="", T=None, issued=None,
                 max_issue=1, pre_dma=None, issue0=0, stage_stamps=False):
        a = self.a
        self.next_dma = issued if issued is not None else min(self.slots, self.nst)
        self.max_issue = max_issue
        self.pre_dma = pre_dma
        self.T2 = T if (T and T.enabled and stage_stamps) else None
        swap = swap or [False] * self.af
        self.wait_stage(0)
        a("s_barrier")
        if T:
            T.stamp()
            if T.enabled: a("s_waitcnt lgkmcnt(0)")
        for n in range(self.PD):
            self.read_frags(n)
        lim = min(self.nst - 1, self.slots - 1)
        k = 0
        while (not self.consumer_only) and self.next_dma <= lim and k < issue0:
            d = self.next_dma; self.next_dma += 1; k += 1
            if self.pre_dma: self.pre_dma(d)
            self.issue_x(d, xsrd, xflags)
            self.issue_w(d, wsrd)
        total = self.nst * self.ksw
        n = 0
        while n < total:
            if loop and n == loop[0] * self.ksw:
                first, count, period = loop
                assert period % self.slots == 0 and (period * self.ksw) % self.nbuf == 0
                def norm(q, base):
                    return [(t[0], t[1], t[2] - base) if isinstance(t, tuple) and t[0] == self.name else t for t in q]
                q0 = norm(self.vmq.q, first)
                nd0 = self.next_dma
                lab = a.newlabel(self.name + "_loop")
                a(f"s_mov_b32 s{s_cnt}, {count}")
                a.label(lab)
                for t in range(period * self.ksw):
                    self.step_code(n + t, xsrd, wsrd, swap, hook, xflags)
                q1 = norm(self.vmq.q, first + period)
                assert q0 == q1, (q0, q1)
                a(f"s_sub_u32 s{s_cnt}, s{s_cnt}, 1")
                a(f"s_cmp_lg_u32 s{s_cnt}, 0")
                a(f"s_cbranch_scc1 {lab}")
                adv = (count - 1) * period
                assert self.next_dma == nd0 + period
                self.next_dma += adv
                last_sp = (n + count * period * self.ksw - 1 + self.PD) // self.ksw
                assert last_sp - 2 + self.slots < self.nst, (last_sp, self.nst)
                self.vmq.q = [(t[0], t[1], t[2] + adv) if isinstance(t, tuple) and t[0] == self.name else t for t in self.vmq.q]
                n += count * period * self.ksw
            else:
                self.step_code(n, xsrd, wsrd, swap, hook, xflags)
                n += 1
```

```python
from asmlib import *
from common import *
from gemm import *

def gen_k1(a, name="k1_kernel", stamps=False, npre=3, hookmode="pk"):
    kernel_header(a, name)
    V = Regs(1, 168, 'v'); S = Regs(28, 60, 's')
    end = a.newlabel("k1_end")
    a("s_cmp_ge_u32 s2, 256")
    a(f"s_cbranch_scc1 {end}")
    a("s_load_dwordx4 s[4:7], s[0:1], 0")
    a("s_load_dwordx2 s[92:93], s[0:1], 32")
    a("s_load_dwordx2 s[94:95], s[0:1], 48")
    a("s_load_dwordx2 s[98:99], s[0:1], 88")
    T = Stamps(a, 60, 16, stamps)
    T.stamp()
    vlane = V.alloc("lane"); tmp = V.alloc("tmp", 8)
    s_wave = S.alloc("wave"); s_wn = S.alloc("wn"); s_wm = S.alloc("wm"); s_wk = S.alloc("wk")
    s_mblk = S.alloc("mblk"); s_j = S.alloc("j"); s_rot = S.alloc("rot")
    st = S.alloc("st", 6)
    s_ones = S.alloc("ones"); s_f0 = S.alloc("f0")
    a(f"v_and_b32 v{vlane}, 63, v0")
    a(f"v_lshrrev_b32 v{tmp}, 6, v0")
    a("s_nop 0")
    a(f"v_readfirstlane_b32 s{s_wave}, v{tmp}")
    a(f"s_and_b32 s{st}, s2, 7")
    a(f"s_lshr_b32 s{st+1}, s2, 3")
    a(f"s_lshr_b32 s{s_mblk}, s{st}, 1")
    a(f"s_lshl_b32 s{s_mblk}, s{s_mblk}, 2")
    a(f"s_and_b32 s{st+2}, s{st+1}, 3")
    a(f"s_add_u32 s{s_mblk}, s{s_mblk}, s{st+2}")
    a(f"s_and_b32 s{s_j}, s{st}, 1")
    a(f"s_lshl_b32 s{s_j}, s{s_j}, 3")
    a(f"s_lshr_b32 s{st+3}, s{st+1}, 2")
    a(f"s_add_u32 s{s_j}, s{s_j}, s{st+3}")
    a(f"s_lshl_b32 s{s_rot}, s{st+2}, 1")
    a(f"s_add_u32 s{s_rot}, s{s_rot}, s{st+3}")
    a(f"s_and_b32 s{s_rot}, s{s_rot}, 7")
    XS, WSP, W3 = 8, 16, 24
    SLOTS, STB = 5, 32768
    l_cons = a.newlabel("k1_cons"); l_pw = a.newlabel("k1_pw"); l_pside = a.newlabel("k1_pside")
    a(f"s_cmp_lt_u32 s{s_wave}, 8")
    a(f"s_cbranch_scc1 {l_cons}")
    a("s_setprio 3")
    pv = V.mark()
    p_x = V.alloc("px", 2); p_b = V.alloc("pb", 2, 2); p_st = V.alloc("pst"); p_ad = V.alloc("pad", 8, 2)
    c3 = V.alloc("c3", 32, 4); acc8 = V.alloc("acc8", 8); sw8 = V.alloc("sw8", 8); vc3 = V.alloc("vc3")
    V.release(pv)
    s_k = st + 4; s_o = st + 5
    s_ph = S.alloc("ph"); s_mb = S.alloc("pm0")
    a(f"s_and_b32 s{s_ph}, s{s_wave}, 1")
    a(f"s_lshl_b32 s{s_mb}, s{s_ph}, 13")
    a(f"s_cmp_ge_u32 s{s_wave}, 10")
    a(f"s_cbranch_scc1 {l_pw}")
    for par in range(2):
        a(f"v_lshrrev_b32 v{tmp}, 4, v{vlane}")
        if par: a(f"v_add_u32 v{tmp}, 4, v{tmp}")
        a(f"v_and_b32 v{tmp+1}, 7, v{vlane}")
        a(f"v_xor_b32 v{tmp}, v{tmp}, v{tmp+1}")
        a(f"v_lshrrev_b32 v{tmp+1}, 3, v{vlane}")
        a(f"v_lshlrev_b32 v{tmp+1}, 10, v{tmp+1}")
        a(f"v_lshl_add_u32 v{p_x+par}, v{tmp}, 4, v{tmp+1}")
    a(f"s_lshl_b32 s{st}, s{s_mblk}, 17")
    a(f"s_lshl_b32 s{st+1}, s{s_ph}, 16")
    a(f"s_add_u32 s{st}, s{st}, s{st+1}")
    a(f"s_mov_b32 s{s_k}, s{s_rot}")
    a("s_waitcnt lgkmcnt(0)")
    srd(a, XS, 4, 2048 * 1024)
    vq = VMQ()
    def px_issue(stage):
        slot = stage % SLOTS
        a(f"s_lshl_b32 s{s_o}, s{s_k}, 7")
        a(f"s_add_u32 s{s_o}, s{s_o}, s{st}")
        for q in range(8):
            a(f"s_add_u32 m0, s{s_mb}, {slot * STB + q * 1024}")
            if q: a(f"s_add_u32 s{s_o}, s{s_o}, 8192")
            else: a("s_nop 0")
            a(f"buffer_load_dwordx4 v{p_x + (q & 1)}, s[{XS}:{XS+3}], s{s_o} offen lds")
            vq.issue(stage)
        a(f"s_add_u32 s{s_k}, s{s_k}, 1")
        a(f"s_and_b32 s{s_k}, s{s_k}, 7")
    def producer_loop(issue, side_issue):
        nd = 0
        for s_ in range(npre):
            issue(s_); nd += 1
        for sp in range(8):
            vq.wait(a, {sp})
            a("s_barrier")
            lim = min(7, max(sp - 2, -1) + SLOTS)
            k = 0
            while nd <= lim and k < 2:
                issue(nd); nd += 1; k += 1
                if nd == 8: side_issue()
        a("s_barrier")
    def side_issue():
        srd(a, W3, 94, 512 * 3584)
        a(f"s_mul_hi_u32 s{st+1}, s2, {(1 << 32) // 28 + 1}")
        a(f"s_mul_i32 s{st+2}, s{st+1}, 28")
        a(f"s_sub_u32 s{st+2}, s2, s{st+2}")
        a(f"s_lshl_b32 s{st+3}, s{st+1}, 2")
        a(f"s_add_u32 s{st+3}, s{st+3}, s{s_wave}")
        a(f"s_sub_u32 s{st+3}, s{st+3}, 8")
        a(f"s_mul_i32 s{s_o}, s{st+3}, {64 * 3584}")
        a(f"s_lshl_b32 s{s_k}, s{st+2}, 7")
        a(f"s_add_u32 s{s_o}, s{s_o}, s{s_k}")
        a(f"s_cmp_lt_u32 s2, 56")
        a(f"s_cselect_b32 s{s_o}, s{s_o}, 0x7f000000")
        a(f"v_lshrrev_b32 v{vc3}, 3, v{vlane}")
        a(f"v_mul_u32_u24 v{vc3}, 3584, v{vc3}")
        a(f"v_and_b32 v{tmp}, 7, v{vlane}")
        a(f"v_lshl_add_u32 v{vc3}, v{tmp}, 4, v{vc3}")
        for i in range(8):
            a(f"buffer_load_dwordx4 v[{c3+4*i}:{c3+4*i+3}], v{vc3}, s[{W3}:{W3+3}], s{s_o} offen")
            vq.issue('c3')
            if i < 7: a(f"s_add_u32 s{s_o}, s{s_o}, {8*3584}")
    producer_loop(px_issue, side_issue)
    a(f"s_branch {l_pside}")
    a.label(l_pw)
    a(f"v_lshrrev_b32 v{tmp}, 4, v{vlane}")
    a(f"v_lshlrev_b32 v{tmp+1}, 2, v{tmp}")
    a(f"v_and_b32 v{tmp+2}, 15, v{vlane}")
    a(f"v_xor_b32 v{tmp+1}, v{tmp+1}, v{tmp+2}")
    a(f"v_cmp_gt_u32 vcc, 12, v{tmp+1}")
    a(f"v_mov_b32 v{tmp+2}, 1024")
    a(f"v_mov_b32 v{tmp+3}, 3072")
    a(f"v_cndmask_b32 v{p_st}, v{tmp+2}, v{tmp+3}, vcc")
    a(f"v_mul_u32_u24 v{tmp}, v{tmp}, v{p_st}")
    a(f"v_lshl_add_u32 v{tmp}, v{tmp+1}, 4, v{tmp}")
    a(f"s_mul_i32 s{st}, s{s_j}, 192")
    a(f"s_lshl_b32 s{st+1}, s{s_j}, 6")
    a(f"s_sub_u32 s{st+1}, s{st+1}, 192")
    a(f"v_mov_b32 v{tmp+2}, s{st+1}")
    a(f"v_mov_b32 v{tmp+3}, s{st}")
    a(f"v_cndmask_b32 v{tmp+2}, v{tmp+2}, v{tmp+3}, vcc")
    a(f"v_add_u32 v{tmp}, v{tmp}, v{tmp+2}")
    a(f"s_mov_b32 s{s_k}, s{s_rot}")
    a("s_waitcnt lgkmcnt(0)")
    a(f"v_mov_b32 v{tmp+2}, s92")
    a(f"v_mov_b32 v{tmp+3}, s6")
    a(f"v_cndmask_b32 v{p_b}, v{tmp+2}, v{tmp+3}, vcc")
    a(f"v_mov_b32 v{tmp+2}, s93")
    a(f"v_mov_b32 v{tmp+3}, s7")
    a(f"v_cndmask_b32 v{p_b+1}, v{tmp+2}, v{tmp+3}, vcc")
    a(f"v_add_co_u32 v{p_b}, vcc, v{p_b}, v{tmp}")
    a("s_nop 1")
    a(f"v_addc_co_u32 v{p_b+1}, vcc, 0, v{p_b+1}, vcc")
    vq.q = []
    def pw_issue(stage):
        slot = stage % SLOTS
        a(f"s_lshl_b32 s{s_o}, s{s_k}, 6")
        a(f"s_lshl_b32 s{st}, s{s_ph}, 5")
        a(f"s_add_u32 s{s_o}, s{s_o}, s{st}")
        for q in range(8):
            ad = p_ad + 2 * (q % 4)
            a(f"v_mad_u64_u32 v[{ad}:{ad+1}], vcc, v{p_st}, s{s_o}, v[{p_b}:{p_b+1}]")
            a(f"s_add_u32 m0, s{s_mb}, {slot * STB + 16384 + q * 1024}")
            a(f"s_add_u32 s{s_o}, s{s_o}, 4")
            a(f"global_load_lds_dwordx4 v[{ad}:{ad+1}], off")
            vq.issue(stage)
        a(f"s_add_u32 s{s_k}, s{s_k}, 1")
        a(f"s_and_b32 s{s_k}, s{s_k}, 7")
    producer_loop(pw_issue, side_issue)
    a.label(l_pside)
    srd(a, WSP, 98, WS_SIZE)
    a(f"s_cmp_ge_u32 s2, 56")
    a(f"s_cbranch_scc1 {end}")
    a(f"s_mov_b32 s{st}, 0x00003f80")
    a(f"s_mov_b32 s{st+1}, 0x3f800000")
    for e in range(8):
        a(f"v_mov_b32 v{acc8+e}, 0")
    a("s_waitcnt vmcnt(0)")
    for i in range(8):
        for d in range(4):
            a(f"v_dot2_f32_bf16 v{acc8+2*d}, v{c3+4*i+d}, s{st}, v{acc8+2*d}")
            a(f"v_dot2_f32_bf16 v{acc8+2*d+1}, v{c3+4*i+d}, s{st+1}, v{acc8+2*d+1}")
    a("s_nop 3")
    for e in range(8):
        a(f"v_add_f32_dpp v{acc8+e}, v{acc8+e}, v{acc8+e} row_ror:8 row_mask:0xf bank_mask:0xf")
    for sw in ("v_permlane16_swap_b32", "v_permlane32_swap_b32"):
        for e in range(8):
            a(f"v_mov_b32 v{sw8+e}, v{acc8+e}")
        a("s_nop 1")
        for e in range(8):
            a(f"{sw} v{sw8+e}, v{acc8+e}")
        for e in range(8):
            a(f"v_add_f32 v{acc8+e}, v{acc8+e}, v{sw8+e}")
    a(f"s_mul_i32 s{st}, s{st+3}, {1792*4}")
    a(f"s_lshl_b32 s{st+1}, s{st+2}, 8")
    a(f"s_add_u32 s{st}, s{st}, s{st+1}")
    a(f"s_add_u32 s{st}, s{st}, {WS_CS3}")
    a(f"v_lshlrev_b32 v{tmp}, 5, v{vlane}")
    a("s_mov_b64 exec, 0xff")
    a(f"buffer_store_dwordx4 v[{acc8}:{acc8+3}], v{tmp}, s[{WSP}:{WSP+3}], s{st} offen")
    a(f"buffer_store_dwordx4 v[{acc8+4}:{acc8+7}], v{tmp}, s[{WSP}:{WSP+3}], s{st} offen offset:16")
    a(f"s_branch {end}")

    a.label(l_cons)
    vmq = VMQ()
    a(f"s_lshr_b32 s{s_wn}, s{s_wave}, 2")
    a(f"s_and_b32 s{s_wm}, s{s_wave}, 3")
    a(f"s_mov_b32 s{s_wk}, 0")
    a(f"s_mov_b32 s{s_ones}, 0x3f803f80")
    a(f"s_mul_i32 s{s_f0}, s{s_j}, 3")
    a(f"s_lshl_b32 s{st}, s{s_wn}, 1")
    a(f"s_add_u32 s{s_f0}, s{s_f0}, s{st}")
    g = Gemm(a, V, S, vmq, name="g1", nw=8, TN=128, TM=128, wn=2, wm=4, wk=1, KC=64, K=512, slots=SLOTS,
             xmode='raw', korder='nat', consumer_only=True)
    g.alloc()
    g._setup2 = (vlane, tmp, st, s_wn, s_wm, s_wk)
    g.setup_reads()
    stat = V.alloc("stat", 2, 2); cs = stat
    vh = V.alloc("h"); vl32 = V.alloc("l32")
    pk = V.alloc("pk", 8, 4); vo = V.alloc("vo"); vov = V.alloc("vov")
    csr = V.alloc("csr", 16, 4); cst = V.alloc("cst", 16, 4)
    mean = V.alloc("mean"); rstd = V.alloc("rstd"); vk1 = V.alloc("vk1")
    s_mbg = S.alloc("mbg"); s_k2 = S.alloc("k2")
    a(f"v_lshrrev_b32 v{vh}, 5, v{vlane}")
    a(f"v_and_b32 v{vl32}, 31, v{vlane}")
    g.zero_acc()
    a(f"v_mov_b32 v{stat}, 0")
    a(f"v_mov_b32 v{stat+1}, 0")
    a(f"v_lshlrev_b32 v{vo}, 4, v{vlane}")
    a(f"v_lshrrev_b32 v{tmp}, 4, v{vl32}")
    a(f"v_lshlrev_b32 v{vov}, 16, v{tmp}")
    a(f"v_and_b32 v{tmp}, 15, v{vl32}")
    a(f"v_lshl_add_u32 v{vov}, v{tmp}, 4, v{vov}")
    a(f"v_lshl_add_u32 v{vov}, v{vh}, 8, v{vov}")
    a(f"v_mov_b32 v{vk1}, {hexf(GK1)}")
    a(f"s_mov_b32 s{s_k2}, {hexf(GK2)}")
    a(f"s_lshl_b32 s{s_mbg}, s{s_mblk}, 2")
    a(f"s_add_u32 s{s_mbg}, s{s_mbg}, s{s_wm}")
    a("s_waitcnt lgkmcnt(0)")
    srd(a, WSP, 98, WS_SIZE)
    T.stamp()
    up = V.alloc("up", 8, 2); sacc = V.alloc("sacc", 4, 2)
    for r in range(4):
        a(f"v_mov_b32 v{sacc+r}, 0")
    def unpack(src):
        for r in range(4):
            a(f"v_lshlrev_b32 v{up+2*r}, 16, v{src+r}")
            a(f"v_and_b32 v{up+2*r+1}, 0xffff0000, v{src+r}")
    def hook0(s, ks, buf):
        if hookmode == "none": return
        x = g.xf + buf * 4
        unpack(x)
        for r in range(4):
            if hookmode == "pk":
                a(f"v_pk_add_f32 v[{sacc}:{sacc+1}], v[{sacc}:{sacc+1}], v[{up+2*r}:{up+2*r+1}]")
                a(f"v_pk_fma_f32 v[{sacc+2}:{sacc+3}], v[{up+2*r}:{up+2*r+1}], v[{up+2*r}:{up+2*r+1}], v[{sacc+2}:{sacc+3}]")
            else:
                for u in range(2):
                    a(f"v_add_f32 v{sacc+u}, v{sacc+u}, v{up+2*r+u}")
                    a(f"v_fmac_f32 v{sacc+2+u}, v{up+2*r+u}, v{up+2*r+u}")
    def hook1(s, ks, buf):
        if hookmode == "none": return
        w = g.wf + (buf * 2 + 1) * 4
        unpack(w)
        for r in range(4):
            if hookmode == "pk":
                q = sacc + 2 * (r & 1)
                a(f"v_pk_add_f32 v[{q}:{q+1}], v[{q}:{q+1}], v[{up+2*r}:{up+2*r+1}]")
            else:
                for u in range(2):
                    q = sacc + 2 * (r & 1) + u
                    a(f"v_add_f32 v{q}, v{q}, v{up+2*r+u}")
    L = {k: a.newlabel("k1_" + k) for k in ("0n", "0s", "1n", "1s", "e0", "e1", "w1")}
    a(f"s_cmp_eq_u32 s{s_wn}, 1")
    a(f"s_cbranch_scc1 {L['w1']}")
    a(f"s_cmp_lt_u32 s{s_f0}, 32")
    a(f"s_cbranch_scc1 {L['0n']}")
    Ti = T.i
    def qkv_epi(i):
        lv = a.newlabel("k1_ev"); ld = a.newlabel("k1_ed")
        a(f"s_add_u32 s{st+4}, s{s_f0}, {i}")
        a(f"s_and_b32 s{st}, s{st+4}, 15")
        a(f"s_lshl_b32 s{st}, s{st}, 7")
        a(f"s_add_u32 s{st}, s{st}, s{s_mbg}")
        a(f"s_lshl_b32 s{st}, s{st}, 10")
        a(f"s_lshr_b32 s{st+1}, s{st+4}, 4")
        a(f"s_lshl_b32 s{st+1}, s{st+1}, 21")
        a(f"s_add_u32 s{st}, s{st}, s{st+1}")
        a(f"s_cmp_ge_u32 s{st+4}, 32")
        a(f"s_cbranch_scc1 {lv}")
        a(f"s_cmp_lt_u32 s{st+4}, 16")
        a(f"s_cselect_b32 s{st+2}, {hexf(QSCALE)}, 1.0")
        for t in range(2):
            c = g.accreg(i, 0) + 8 * t
            for r in range(8):
                a(f"v_mul_f32 v{c+r}, s{st+2}, v{c+r}")
            p = pk + 4 * t
            pack8(a, c, p)
            a(f"s_add_u32 s{st+3}, s{st}, {t * 65536}")
            a(f"buffer_store_dwordx4 v[{p}:{p+3}], v{vo}, s[{WSP}:{WSP+3}], s{st+3} offen")
        a(f"s_branch {ld}")
        a.label(lv)
        for t in range(2):
            c = g.accreg(i, 0) + 8 * t
            p = pk + 4 * t
            pack8(a, c, p)
            a(f"buffer_store_dwordx4 v[{p}:{p+3}], v{vov}, s[{WSP}:{WSP+3}], s{st} offen offset:{t*512}")
        a.label(ld)
        a("s_nop 1")
    assert WS_Q == 0 and WS_K == 2 * MB and WS_V == 4 * MB
    for lab, sw in ((L['0s'], [True, True]), (L['0n'], [False, False])):
        a.label(lab)
        T.i = Ti
        g.mainloop(None, None, swap=sw, hook=hook0, T=T, stage_stamps=True)
        T.stamp()
        if lab == L['0s']:
            a(f"s_branch {L['e0']}")
    a.label(L['e0'])
    a(f"v_add_f32 v{stat}, v{sacc}, v{sacc+1}")
    a(f"v_add_f32 v{stat+1}, v{sacc+2}, v{sacc+3}")
    a(f"v_mov_b32 v{tmp+2}, v{stat}")
    a(f"v_mov_b32 v{tmp+3}, v{stat+1}")
    a("s_nop 1")
    a(f"v_permlane32_swap_b32 v{tmp+2}, v{stat}")
    a(f"v_permlane32_swap_b32 v{tmp+3}, v{stat+1}")
    a(f"v_add_f32 v{stat}, v{stat}, v{tmp+2}")
    a(f"v_add_f32 v{stat+1}, v{stat+1}, v{tmp+3}")
    a(f"s_lshl_b32 s{st}, s{s_wm}, 8")
    a(f"v_lshlrev_b32 v{tmp}, 3, v{vl32}")
    a(f"v_add_u32 v{tmp}, s{st}, v{tmp}")
    a(f"ds_write_b64 v{tmp}, v[{stat}:{stat+1}]")
    a("s_waitcnt lgkmcnt(0)")
    a("s_barrier")
    qkv_epi(0); qkv_epi(1)
    ldone = a.newlabel("k1_done")
    a(f"s_branch {ldone}")
    a.label(L['w1'])
    a(f"s_cmp_lt_u32 s{s_f0}, 32")
    a(f"s_cbranch_scc1 {L['1n']}")
    for lab, sw in ((L['1s'], [True, False]), (L['1n'], [False, False])):
        a.label(lab)
        T.i = Ti
        g.mainloop(None, None, swap=sw, hook=hook1, T=T, stage_stamps=True)
        T.stamp()
        if lab == L['1s']:
            a(f"s_branch {L['e1']}")
    a.label(L['e1'])
    a(f"v_add_f32 v{sacc}, v{sacc}, v{sacc+1}")
    a(f"v_add_f32 v{sacc+2}, v{sacc+2}, v{sacc+3}")
    a(f"v_add_f32 v{cs}, v{sacc}, v{sacc+2}")
    a(f"v_mov_b32 v{tmp+2}, v{cs}")
    a("s_nop 1")
    a(f"v_permlane32_swap_b32 v{tmp+2}, v{cs}")
    a(f"v_add_f32 v{cs}, v{cs}, v{tmp+2}")
    a(f"s_lshl_b32 s{st}, s{s_wm}, 7")
    a(f"v_lshlrev_b32 v{tmp}, 2, v{vl32}")
    a(f"v_add_u32 v{tmp}, s{st}, v{tmp}")
    a(f"ds_write_b32 v{tmp}, v{cs} offset:2048")
    a(f"v_lshlrev_b32 v{tmp+1}, 4, v{vh}")
    a(f"v_add_u32 v{tmp+1}, s{st}, v{tmp+1}")
    a("s_waitcnt lgkmcnt(0)")
    for aa in range(4):
        a(f"ds_read_b128 v[{csr+4*aa}:{csr+4*aa+3}], v{tmp+1} offset:{2048 + aa * 32}")
    a("s_barrier")
    a(f"s_lshl_b32 s{st}, s{s_wm}, 8")
    a(f"v_lshlrev_b32 v{tmp}, 3, v{vl32}")
    a(f"v_add_u32 v{tmp}, s{st}, v{tmp}")
    a(f"ds_read_b64 v[{stat}:{stat+1}], v{tmp}")
    qkv_epi(0)
    a("s_waitcnt lgkmcnt(0)")
    a(f"v_mul_f32 v{mean}, {hexf(1/512)}, v{stat}")
    a(f"v_mul_f32 v{stat+1}, {hexf(1/512)}, v{stat+1}")
    a(f"v_fma_f32 v{stat+1}, -v{mean}, v{mean}, v{stat+1}")
    a(f"v_max_f32 v{stat+1}, 0, v{stat+1}")
    a(f"v_add_f32 v{stat+1}, {hexf(1e-5)}, v{stat+1}")
    a(f"v_rsq_f32 v{rstd}, v{stat+1}")
    a(f"s_lshl_b32 s{st}, s{s_j}, 1")
    a(f"s_lshl_b32 s{st+1}, s{s_mbg}, 5")
    a(f"s_add_u32 s{st}, s{st}, s{st+1}")
    a(f"s_lshl_b32 s{st}, s{st}, 10")
    a(f"s_add_u32 s{st}, s{st}, {WS_H}")
    c = g.accreg(1, 0)
    for r in range(16):
        a(f"v_fma_f32 v{c+r}, -v{mean}, v{csr+r}, v{c+r}")
    for r in range(16):
        a(f"v_mul_f32 v{c+r}, v{c+r}, v{rstd}")
    gelu_vec(a, [c + r for r in range(16)], [cst + r for r in range(16)], vk1, s_k2)
    for t in range(2):
        p = pk + 4 * t
        pack8(a, c + 8 * t, p)
        a(f"buffer_store_dwordx4 v[{p}:{p+3}], v{vo}, s[{WSP}:{WSP+3}], s{st} offen offset:{t*1024}")
    a.label(ldone)
    T.stamp()
    if stamps:
        a("s_waitcnt vmcnt(0)")
        T.stamp()
    T.store(WSP, tmp, st, s_wave)
    a.label(end)
    a("s_endpgm")
    return dict(name=name, vgpr=V.high, sgpr=100, grid=256, block=768, lds=SLOTS * STB)
```

```python
MB = 1 << 20
WS_Q  = 0 * MB
WS_K  = 2 * MB
WS_V  = 4 * MB
WS_H  = 6 * MB
WS_X1 = 8 * MB
WS_O  = 10 * MB
WS_B  = 12 * MB
WS_H3 = 14 * MB
WS_G  = 22 * MB
WS_CS3 = 22 * MB + 65536
WS_ST = 23 * MB
WS_FLAG = 24 * MB
WS_SIZE = 0x10000000
LOG2E = 1.4426950408889634
QSCALE = 0.25 * LOG2E
GK1 = -2.0 * 0.7978845608028654 * LOG2E
GK2 = GK1 * 0.044715
```

```python
from build import build
from k1 import gen_k1
from attn import gen_attn
from broles import gen_single
build([lambda a: gen_k1(a, npre=2, hookmode="sc", prefetch=True), lambda a: gen_attn(a, lag=6), gen_single('g3'), gen_single('g4'), gen_single('g5')], "x3b.s")
```

```python
from asmlib import *
from layout import *

def srd(a, d, base, nbytes):
    a(f"s_mov_b32 s{d}, s{base}")
    a(f"s_and_b32 s{d+1}, s{base+1}, 0xffff")
    a(f"s_mov_b32 s{d+2}, {nbytes:#x}")
    a(f"s_mov_b32 s{d+3}, 0x00020000")

def gelu(a, x, t0, t1, s_k1, s_k2):
    a(f"v_mul_f32 v{t0}, v{x}, v{x}")
    a(f"v_fma_f32 v{t0}, v{t0}, s{s_k2}, v{t1}")
    a(f"v_mul_f32 v{t0}, v{t0}, v{x}")
    a(f"v_exp_f32 v{t0}, v{t0}")
    a(f"s_nop 0")
    a(f"v_add_f32 v{t0}, 1.0, v{t0}")
    a(f"v_rcp_f32 v{t0}, v{t0}")
    a(f"s_nop 0")
    a(f"v_mul_f32 v{x}, v{x}, v{t0}")

def gelu_vec(a, xs, ts, vk1, s_k2):
    n = len(xs)
    assert len(ts) >= n and n >= 2
    for x, t in zip(xs, ts): a(f"v_mul_f32 v{t}, v{x}, v{x}")
    for x, t in zip(xs, ts): a(f"v_fma_f32 v{t}, v{t}, s{s_k2}, v{vk1}")
    for x, t in zip(xs, ts): a(f"v_mul_f32 v{t}, v{t}, v{x}")
    for x, t in zip(xs, ts): a(f"v_exp_f32 v{t}, v{t}")
    for x, t in zip(xs, ts): a(f"v_add_f32 v{t}, 1.0, v{t}")
    for x, t in zip(xs, ts): a(f"v_rcp_f32 v{t}, v{t}")
    for x, t in zip(xs, ts): a(f"v_mul_f32 v{x}, v{x}, v{t}")

def pack8(a, src, dst):
    for i in range(4):
        a(f"v_cvt_pk_bf16_f32 v{dst+i}, v{src+2*i}, v{src+2*i+1}")

WS_DBG = 30 * MB
class Stamps:
    def __init__(self, a, sbase, n, enabled):
        self.a = a; self.sbase = sbase; self.n = n; self.i = 0; self.enabled = enabled
    def stamp(self):
        if not self.enabled: return
        assert self.i < self.n
        self.a(f"s_memtime s[{self.sbase + 2*self.i}:{self.sbase + 2*self.i + 1}]")
        self.i += 1
    def rstamp(self):
        if not self.enabled: return
        assert self.i < self.n
        self.a(f"s_memrealtime s[{self.sbase + 2*self.i}:{self.sbase + 2*self.i + 1}]")
        self.i += 1
    def store(self, wsp, vtmp, stmp, s_wave, slot=0, s_id="s2"):
        if not self.enabled: return
        a = self.a
        l = a.newlabel("nostamp")
        a("s_waitcnt lgkmcnt(0)")
        a(f"s_lshl_b32 s{stmp}, {s_id}, 3")
        a(f"s_add_u32 s{stmp}, s{stmp}, s{s_wave}")
        a(f"s_lshl_b32 s{stmp}, s{stmp}, 6")
        a(f"s_add_u32 s{stmp}, s{stmp}, {WS_DBG + slot * 0x80000}")
        a(f"v_mov_b32 v{vtmp+1}, 0")
        a("s_mov_b64 exec, 1")
        for i in range(self.i):
            a(f"v_mov_b32 v{vtmp}, s{self.sbase + 2*i}")
            a(f"buffer_store_dword v{vtmp}, v{vtmp+1}, s[{wsp}:{wsp+3}], s{stmp} offen offset:{4*i}")
        a("s_mov_b64 exec, -1")


def code_prefetch(a, vlane, vdst, vtmp, stmp, s_wave, nkb_sym="CODE_KB", nwaves=8):
    l = a.newlabel("pc")
    a(f"s_getpc_b64 s[{stmp}:{stmp+1}]")
    a.label(l)
    a(f"s_sub_u32 s{stmp}, s{stmp}, {l}-code_start")
    a(f"s_subb_u32 s{stmp+1}, s{stmp+1}, 0")
    a(f"s_lshr_b32 s{stmp+2}, s2, 3")
    a(f"s_mul_i32 s{stmp+2}, s{stmp+2}, {nwaves}")
    a(f"s_add_u32 s{stmp+2}, s{stmp+2}, s{s_wave}")
    for _ in range(8):
        a(f"s_sub_u32 s{stmp+3}, s{stmp+2}, {nkb_sym}")
        a(f"s_min_u32 s{stmp+2}, s{stmp+2}, s{stmp+3}")
    a(f"s_lshl_b32 s{stmp+2}, s{stmp+2}, 10")
    a(f"v_lshlrev_b32 v{vtmp}, 4, v{vlane}")
    a(f"v_add_u32 v{vtmp}, s{stmp+2}, v{vtmp}")
    a(f"global_load_dwordx4 v[{vdst}:{vdst+3}], v{vtmp}, s[{stmp}:{stmp+1}]")
```

```python
from asmlib import *
from common import *
from gemm import *

def gen_k1(a, name="k1_kernel", stamps=False, npre=3, hookmode="pk", prefetch=False):
    kernel_header(a, name)
    V = Regs(1, 164, 'v'); S = Regs(28, 56, 's')
    end = a.newlabel("k1_end")
    a("s_cmp_ge_u32 s2, 256")
    a(f"s_cbranch_scc1 {end}")
    a("s_load_dwordx4 s[4:7], s[0:1], 0")
    a("s_load_dwordx2 s[92:93], s[0:1], 32")
    a("s_load_dwordx2 s[94:95], s[0:1], 48")
    a("s_load_dwordx2 s[98:99], s[0:1], 88")
    T = Stamps(a, 60, 16, stamps)
    T.stamp()
    vlane = V.alloc("lane"); tmp = V.alloc("tmp", 8)
    s_wave = S.alloc("wave"); s_wn = S.alloc("wn"); s_wm = S.alloc("wm"); s_wk = S.alloc("wk")
    s_mblk = S.alloc("mblk"); s_j = S.alloc("j"); s_rot = S.alloc("rot")
    st = S.alloc("st", 6)
    s_ones = S.alloc("ones"); s_f0 = S.alloc("f0")
    a(f"v_and_b32 v{vlane}, 63, v0")
    a(f"v_lshrrev_b32 v{tmp}, 6, v0")
    a("s_nop 0")
    a(f"v_readfirstlane_b32 s{s_wave}, v{tmp}")
    a(f"s_and_b32 s{st}, s2, 7")
    a(f"s_lshr_b32 s{st+1}, s2, 3")
    a(f"s_lshr_b32 s{s_mblk}, s{st}, 1")
    a(f"s_lshl_b32 s{s_mblk}, s{s_mblk}, 2")
    a(f"s_and_b32 s{st+2}, s{st+1}, 3")
    a(f"s_add_u32 s{s_mblk}, s{s_mblk}, s{st+2}")
    a(f"s_and_b32 s{s_j}, s{st}, 1")
    a(f"s_lshl_b32 s{s_j}, s{s_j}, 3")
    a(f"s_lshr_b32 s{st+3}, s{st+1}, 2")
    a(f"s_add_u32 s{s_j}, s{s_j}, s{st+3}")
    a(f"s_lshl_b32 s{s_rot}, s{st+2}, 1")
    a(f"s_add_u32 s{s_rot}, s{s_rot}, s{st+3}")
    a(f"s_and_b32 s{s_rot}, s{s_rot}, 7")
    XS, WSP, W3 = 8, 16, 24
    SLOTS, STB = 5, 32768
    l_cons = a.newlabel("k1_cons"); l_pw = a.newlabel("k1_pw"); l_pside = a.newlabel("k1_pside")
    a(f"s_cmp_lt_u32 s{s_wave}, 8")
    a(f"s_cbranch_scc1 {l_cons}")
    a("s_setprio 3")
    pv = V.mark()
    p_x = V.alloc("px", 2); p_b = V.alloc("pb", 2, 2); p_st = V.alloc("pst"); p_ad = V.alloc("pad", 8, 2)
    c3 = V.alloc("c3", 32, 4); acc8 = V.alloc("acc8", 8); sw8 = V.alloc("sw8", 8); vc3 = V.alloc("vc3")
    V.release(pv)
    s_k = st + 4; s_o = st + 5
    s_ph = S.alloc("ph"); s_mb = S.alloc("pm0")
    a(f"s_and_b32 s{s_ph}, s{s_wave}, 1")
    a(f"s_lshl_b32 s{s_mb}, s{s_ph}, 13")
    a(f"s_cmp_ge_u32 s{s_wave}, 10")
    a(f"s_cbranch_scc1 {l_pw}")
    for par in range(2):
        a(f"v_lshrrev_b32 v{tmp}, 4, v{vlane}")
        if par: a(f"v_add_u32 v{tmp}, 4, v{tmp}")
        a(f"v_and_b32 v{tmp+1}, 7, v{vlane}")
        a(f"v_xor_b32 v{tmp}, v{tmp}, v{tmp+1}")
        a(f"v_lshrrev_b32 v{tmp+1}, 3, v{vlane}")
        a(f"v_lshlrev_b32 v{tmp+1}, 10, v{tmp+1}")
        a(f"v_lshl_add_u32 v{p_x+par}, v{tmp}, 4, v{tmp+1}")
    a(f"s_lshl_b32 s{st}, s{s_mblk}, 17")
    a(f"s_lshl_b32 s{st+1}, s{s_ph}, 16")
    a(f"s_add_u32 s{st}, s{st}, s{st+1}")
    a(f"s_mov_b32 s{s_k}, s{s_rot}")
    a("s_waitcnt lgkmcnt(0)")
    srd(a, XS, 4, 2048 * 1024)
    vq = VMQ()
    def px_issue(stage):
        slot = stage % SLOTS
        a(f"s_lshl_b32 s{s_o}, s{s_k}, 7")
        a(f"s_add_u32 s{s_o}, s{s_o}, s{st}")
        for q in range(8):
            a(f"s_add_u32 m0, s{s_mb}, {slot * STB + q * 1024}")
            if q: a(f"s_add_u32 s{s_o}, s{s_o}, 8192")
            else: a("s_nop 0")
            a(f"buffer_load_dwordx4 v{p_x + (q & 1)}, s[{XS}:{XS+3}], s{s_o} offen lds")
            vq.issue(stage)
        a(f"s_add_u32 s{s_k}, s{s_k}, 1")
        a(f"s_and_b32 s{s_k}, s{s_k}, 7")
    def producer_loop(issue, side_issue):
        nd = 0
        for s_ in range(npre):
            issue(s_); nd += 1
        for sp in range(8):
            vq.wait(a, {sp})
            a("s_barrier")
            lim = min(7, max(sp - 2, -1) + SLOTS)
            k = 0
            while nd <= lim and k < 2:
                issue(nd); nd += 1; k += 1
                if nd == 8: side_issue()
        a("s_barrier")
    def side_issue():
        srd(a, W3, 94, 512 * 3584)
        a(f"s_mul_hi_u32 s{st+1}, s2, {(1 << 32) // 28 + 1}")
        a(f"s_mul_i32 s{st+2}, s{st+1}, 28")
        a(f"s_sub_u32 s{st+2}, s2, s{st+2}")
        a(f"s_lshl_b32 s{st+3}, s{st+1}, 2")
        a(f"s_add_u32 s{st+3}, s{st+3}, s{s_wave}")
        a(f"s_sub_u32 s{st+3}, s{st+3}, 8")
        a(f"s_mul_i32 s{s_o}, s{st+3}, {64 * 3584}")
        a(f"s_lshl_b32 s{s_k}, s{st+2}, 7")
        a(f"s_add_u32 s{s_o}, s{s_o}, s{s_k}")
        a(f"s_cmp_lt_u32 s2, 56")
        a(f"s_cselect_b32 s{s_o}, s{s_o}, 0x7f000000")
        a(f"v_lshrrev_b32 v{vc3}, 3, v{vlane}")
        a(f"v_mul_u32_u24 v{vc3}, 3584, v{vc3}")
        a(f"v_and_b32 v{tmp}, 7, v{vlane}")
        a(f"v_lshl_add_u32 v{vc3}, v{tmp}, 4, v{vc3}")
        for i in range(8):
            a(f"buffer_load_dwordx4 v[{c3+4*i}:{c3+4*i+3}], v{vc3}, s[{W3}:{W3+3}], s{s_o} offen")
            vq.issue('c3')
            if i < 7: a(f"s_add_u32 s{s_o}, s{s_o}, {8*3584}")
    producer_loop(px_issue, side_issue)
    a(f"s_branch {l_pside}")
    a.label(l_pw)
    a(f"v_lshrrev_b32 v{tmp}, 4, v{vlane}")
    a(f"v_lshlrev_b32 v{tmp+1}, 2, v{tmp}")
    a(f"v_and_b32 v{tmp+2}, 15, v{vlane}")
    a(f"v_xor_b32 v{tmp+1}, v{tmp+1}, v{tmp+2}")
    a(f"v_cmp_gt_u32 vcc, 12, v{tmp+1}")
    a(f"v_mov_b32 v{tmp+2}, 1024")
    a(f"v_mov_b32 v{tmp+3}, 3072")
    a(f"v_cndmask_b32 v{p_st}, v{tmp+2}, v{tmp+3}, vcc")
    a(f"v_mul_u32_u24 v{tmp}, v{tmp}, v{p_st}")
    a(f"v_lshl_add_u32 v{tmp}, v{tmp+1}, 4, v{tmp}")
    a(f"s_mul_i32 s{st}, s{s_j}, 192")
    a(f"s_lshl_b32 s{st+1}, s{s_j}, 6")
    a(f"s_sub_u32 s{st+1}, s{st+1}, 192")
    a(f"v_mov_b32 v{tmp+2}, s{st+1}")
    a(f"v_mov_b32 v{tmp+3}, s{st}")
    a(f"v_cndmask_b32 v{tmp+2}, v{tmp+2}, v{tmp+3}, vcc")
    a(f"v_add_u32 v{tmp}, v{tmp}, v{tmp+2}")
    a(f"s_mov_b32 s{s_k}, s{s_rot}")
    a("s_waitcnt lgkmcnt(0)")
    a(f"v_mov_b32 v{tmp+2}, s92")
    a(f"v_mov_b32 v{tmp+3}, s6")
    a(f"v_cndmask_b32 v{p_b}, v{tmp+2}, v{tmp+3}, vcc")
    a(f"v_mov_b32 v{tmp+2}, s93")
    a(f"v_mov_b32 v{tmp+3}, s7")
    a(f"v_cndmask_b32 v{p_b+1}, v{tmp+2}, v{tmp+3}, vcc")
    a(f"v_add_co_u32 v{p_b}, vcc, v{p_b}, v{tmp}")
    a("s_nop 1")
    a(f"v_addc_co_u32 v{p_b+1}, vcc, 0, v{p_b+1}, vcc")
    vq.q = []
    def pw_issue(stage):
        slot = stage % SLOTS
        a(f"s_lshl_b32 s{s_o}, s{s_k}, 6")
        a(f"s_lshl_b32 s{st}, s{s_ph}, 5")
        a(f"s_add_u32 s{s_o}, s{s_o}, s{st}")
        for q in range(8):
            ad = p_ad + 2 * (q % 4)
            a(f"v_mad_u64_u32 v[{ad}:{ad+1}], vcc, v{p_st}, s{s_o}, v[{p_b}:{p_b+1}]")
            a(f"s_add_u32 m0, s{s_mb}, {slot * STB + 16384 + q * 1024}")
            a(f"s_add_u32 s{s_o}, s{s_o}, 4")
            a(f"global_load_lds_dwordx4 v[{ad}:{ad+1}], off")
            vq.issue(stage)
        a(f"s_add_u32 s{s_k}, s{s_k}, 1")
        a(f"s_and_b32 s{s_k}, s{s_k}, 7")
    producer_loop(pw_issue, side_issue)
    a.label(l_pside)
    srd(a, WSP, 98, WS_SIZE)
    a(f"s_cmp_ge_u32 s2, 56")
    a(f"s_cbranch_scc1 {end}")
    a(f"s_mov_b32 s{st}, 0x00003f80")
    a(f"s_mov_b32 s{st+1}, 0x3f800000")
    for e in range(8):
        a(f"v_mov_b32 v{acc8+e}, 0")
    a("s_waitcnt vmcnt(0)")
    for i in range(8):
        for d in range(4):
            a(f"v_dot2_f32_bf16 v{acc8+2*d}, v{c3+4*i+d}, s{st}, v{acc8+2*d}")
            a(f"v_dot2_f32_bf16 v{acc8+2*d+1}, v{c3+4*i+d}, s{st+1}, v{acc8+2*d+1}")
    a("s_nop 3")
    for e in range(8):
        a(f"v_add_f32_dpp v{acc8+e}, v{acc8+e}, v{acc8+e} row_ror:8 row_mask:0xf bank_mask:0xf")
    for sw in ("v_permlane16_swap_b32", "v_permlane32_swap_b32"):
        for e in range(8):
            a(f"v_mov_b32 v{sw8+e}, v{acc8+e}")
        a("s_nop 1")
        for e in range(8):
            a(f"{sw} v{sw8+e}, v{acc8+e}")
        for e in range(8):
            a(f"v_add_f32 v{acc8+e}, v{acc8+e}, v{sw8+e}")
    a(f"s_mul_i32 s{st}, s{st+3}, {1792*4}")
    a(f"s_lshl_b32 s{st+1}, s{st+2}, 8")
    a(f"s_add_u32 s{st}, s{st}, s{st+1}")
    a(f"s_add_u32 s{st}, s{st}, {WS_CS3}")
    a(f"v_lshlrev_b32 v{tmp}, 5, v{vlane}")
    a("s_mov_b64 exec, 0xff")
    a(f"buffer_store_dwordx4 v[{acc8}:{acc8+3}], v{tmp}, s[{WSP}:{WSP+3}], s{st} offen")
    a(f"buffer_store_dwordx4 v[{acc8+4}:{acc8+7}], v{tmp}, s[{WSP}:{WSP+3}], s{st} offen offset:16")
    a(f"s_branch {end}")

    a.label(l_cons)
    vmq = VMQ()
    if prefetch:
        code_prefetch(a, vlane, 164, tmp, 56, s_wave)
    a(f"s_lshr_b32 s{s_wn}, s{s_wave}, 2")
    a(f"s_and_b32 s{s_wm}, s{s_wave}, 3")
    a(f"s_mov_b32 s{s_wk}, 0")
    a(f"s_mov_b32 s{s_ones}, 0x3f803f80")
    a(f"s_mul_i32 s{s_f0}, s{s_j}, 3")
    a(f"s_lshl_b32 s{st}, s{s_wn}, 1")
    a(f"s_add_u32 s{s_f0}, s{s_f0}, s{st}")
    g = Gemm(a, V, S, vmq, name="g1", nw=8, TN=128, TM=128, wn=2, wm=4, wk=1, KC=64, K=512, slots=SLOTS,
             xmode='raw', korder='nat', consumer_only=True)
    g.alloc()
    g._setup2 = (vlane, tmp, st, s_wn, s_wm, s_wk)
    g.setup_reads()
    stat = V.alloc("stat", 2, 2); cs = stat
    vh = V.alloc("h"); vl32 = V.alloc("l32")
    pk = V.alloc("pk", 8, 4); vo = V.alloc("vo"); vov = V.alloc("vov")
    csr = V.alloc("csr", 16, 4); cst = V.alloc("cst", 16, 4)
    mean = V.alloc("mean"); rstd = V.alloc("rstd"); vk1 = V.alloc("vk1")
    s_mbg = S.alloc("mbg"); s_k2 = S.alloc("k2")
    a(f"v_lshrrev_b32 v{vh}, 5, v{vlane}")
    a(f"v_and_b32 v{vl32}, 31, v{vlane}")
    g.zero_acc()
    a(f"v_mov_b32 v{stat}, 0")
    a(f"v_mov_b32 v{stat+1}, 0")
    a(f"v_lshlrev_b32 v{vo}, 4, v{vlane}")
    a(f"v_lshrrev_b32 v{tmp}, 4, v{vl32}")
    a(f"v_lshlrev_b32 v{vov}, 16, v{tmp}")
    a(f"v_and_b32 v{tmp}, 15, v{vl32}")
    a(f"v_lshl_add_u32 v{vov}, v{tmp}, 4, v{vov}")
    a(f"v_lshl_add_u32 v{vov}, v{vh}, 8, v{vov}")
    a(f"v_mov_b32 v{vk1}, {hexf(GK1)}")
    a(f"s_mov_b32 s{s_k2}, {hexf(GK2)}")
    a(f"s_lshl_b32 s{s_mbg}, s{s_mblk}, 2")
    a(f"s_add_u32 s{s_mbg}, s{s_mbg}, s{s_wm}")
    a("s_waitcnt lgkmcnt(0)")
    srd(a, WSP, 98, WS_SIZE)
    T.stamp()
    up = V.alloc("up", 8, 2); sacc = V.alloc("sacc", 4, 2)
    for r in range(4):
        a(f"v_mov_b32 v{sacc+r}, 0")
    def unpack(src):
        for r in range(4):
            a(f"v_lshlrev_b32 v{up+2*r}, 16, v{src+r}")
            a(f"v_and_b32 v{up+2*r+1}, 0xffff0000, v{src+r}")
    def hook0(s, ks, buf):
        if hookmode == "none": return
        x = g.xf + buf * 4
        unpack(x)
        for r in range(4):
            if hookmode == "pk":
                a(f"v_pk_add_f32 v[{sacc}:{sacc+1}], v[{sacc}:{sacc+1}], v[{up+2*r}:{up+2*r+1}]")
                a(f"v_pk_fma_f32 v[{sacc+2}:{sacc+3}], v[{up+2*r}:{up+2*r+1}], v[{up+2*r}:{up+2*r+1}], v[{sacc+2}:{sacc+3}]")
            else:
                for u in range(2):
                    a(f"v_add_f32 v{sacc+u}, v{sacc+u}, v{up+2*r+u}")
                    a(f"v_fmac_f32 v{sacc+2+u}, v{up+2*r+u}, v{up+2*r+u}")
    def hook1(s, ks, buf):
        if hookmode == "none": return
        w = g.wf + (buf * 2 + 1) * 4
        unpack(w)
        for r in range(4):
            if hookmode == "pk":
                q = sacc + 2 * (r & 1)
                a(f"v_pk_add_f32 v[{q}:{q+1}], v[{q}:{q+1}], v[{up+2*r}:{up+2*r+1}]")
            else:
                for u in range(2):
                    q = sacc + 2 * (r & 1) + u
                    a(f"v_add_f32 v{q}, v{q}, v{up+2*r+u}")
    L = {k: a.newlabel("k1_" + k) for k in ("0n", "0s", "1n", "1s", "e0", "e1", "w1")}
    a(f"s_cmp_eq_u32 s{s_wn}, 1")
    a(f"s_cbranch_scc1 {L['w1']}")
    a(f"s_cmp_lt_u32 s{s_f0}, 32")
    a(f"s_cbranch_scc1 {L['0n']}")
    Ti = T.i
    def qkv_epi(i):
        lv = a.newlabel("k1_ev"); ld = a.newlabel("k1_ed")
        a(f"s_add_u32 s{st+4}, s{s_f0}, {i}")
        a(f"s_and_b32 s{st}, s{st+4}, 15")
        a(f"s_lshl_b32 s{st}, s{st}, 7")
        a(f"s_add_u32 s{st}, s{st}, s{s_mbg}")
        a(f"s_lshl_b32 s{st}, s{st}, 10")
        a(f"s_lshr_b32 s{st+1}, s{st+4}, 4")
        a(f"s_lshl_b32 s{st+1}, s{st+1}, 21")
        a(f"s_add_u32 s{st}, s{st}, s{st+1}")
        a(f"s_cmp_ge_u32 s{st+4}, 32")
        a(f"s_cbranch_scc1 {lv}")
        a(f"s_cmp_lt_u32 s{st+4}, 16")
        a(f"s_cselect_b32 s{st+2}, {hexf(QSCALE)}, 1.0")
        for t in range(2):
            c = g.accreg(i, 0) + 8 * t
            for r in range(8):
                a(f"v_mul_f32 v{c+r}, s{st+2}, v{c+r}")
            p = pk + 4 * t
            pack8(a, c, p)
            a(f"s_add_u32 s{st+3}, s{st}, {t * 65536}")
            a(f"buffer_store_dwordx4 v[{p}:{p+3}], v{vo}, s[{WSP}:{WSP+3}], s{st+3} offen")
        a(f"s_branch {ld}")
        a.label(lv)
        for t in range(2):
            c = g.accreg(i, 0) + 8 * t
            p = pk + 4 * t
            pack8(a, c, p)
            a(f"buffer_store_dwordx4 v[{p}:{p+3}], v{vov}, s[{WSP}:{WSP+3}], s{st} offen offset:{t*512}")
        a.label(ld)
        a("s_nop 1")
    assert WS_Q == 0 and WS_K == 2 * MB and WS_V == 4 * MB
    for lab, sw in ((L['0s'], [True, True]), (L['0n'], [False, False])):
        a.label(lab)
        T.i = Ti
        g.mainloop(None, None, swap=sw, hook=hook0, T=T, stage_stamps=True)
        T.stamp()
        if lab == L['0s']:
            a(f"s_branch {L['e0']}")
    a.label(L['e0'])
    a(f"v_add_f32 v{stat}, v{sacc}, v{sacc+1}")
    a(f"v_add_f32 v{stat+1}, v{sacc+2}, v{sacc+3}")
    a(f"v_mov_b32 v{tmp+2}, v{stat}")
    a(f"v_mov_b32 v{tmp+3}, v{stat+1}")
    a("s_nop 1")
    a(f"v_permlane32_swap_b32 v{tmp+2}, v{stat}")
    a(f"v_permlane32_swap_b32 v{tmp+3}, v{stat+1}")
    a(f"v_add_f32 v{stat}, v{stat}, v{tmp+2}")
    a(f"v_add_f32 v{stat+1}, v{stat+1}, v{tmp+3}")
    a(f"s_lshl_b32 s{st}, s{s_wm}, 8")
    a(f"v_lshlrev_b32 v{tmp}, 3, v{vl32}")
    a(f"v_add_u32 v{tmp}, s{st}, v{tmp}")
    a(f"ds_write_b64 v{tmp}, v[{stat}:{stat+1}]")
    a("s_waitcnt lgkmcnt(0)")
    a("s_barrier")
    qkv_epi(0); qkv_epi(1)
    ldone = a.newlabel("k1_done")
    a(f"s_branch {ldone}")
    a.label(L['w1'])
    a(f"s_cmp_lt_u32 s{s_f0}, 32")
    a(f"s_cbranch_scc1 {L['1n']}")
    for lab, sw in ((L['1s'], [True, False]), (L['1n'], [False, False])):
        a.label(lab)
        T.i = Ti
        g.mainloop(None, None, swap=sw, hook=hook1, T=T, stage_stamps=True)
        T.stamp()
        if lab == L['1s']:
            a(f"s_branch {L['e1']}")
    a.label(L['e1'])
    a(f"v_add_f32 v{sacc}, v{sacc}, v{sacc+1}")
    a(f"v_add_f32 v{sacc+2}, v{sacc+2}, v{sacc+3}")
    a(f"v_add_f32 v{cs}, v{sacc}, v{sacc+2}")
    a(f"v_mov_b32 v{tmp+2}, v{cs}")
    a("s_nop 1")
    a(f"v_permlane32_swap_b32 v{tmp+2}, v{cs}")
    a(f"v_add_f32 v{cs}, v{cs}, v{tmp+2}")
    a(f"s_lshl_b32 s{st}, s{s_wm}, 7")
    a(f"v_lshlrev_b32 v{tmp}, 2, v{vl32}")
    a(f"v_add_u32 v{tmp}, s{st}, v{tmp}")
    a(f"ds_write_b32 v{tmp}, v{cs} offset:2048")
    a(f"v_lshlrev_b32 v{tmp+1}, 4, v{vh}")
    a(f"v_add_u32 v{tmp+1}, s{st}, v{tmp+1}")
    a("s_waitcnt lgkmcnt(0)")
    for aa in range(4):
        a(f"ds_read_b128 v[{csr+4*aa}:{csr+4*aa+3}], v{tmp+1} offset:{2048 + aa * 32}")
    a("s_barrier")
    a(f"s_lshl_b32 s{st}, s{s_wm}, 8")
    a(f"v_lshlrev_b32 v{tmp}, 3, v{vl32}")
    a(f"v_add_u32 v{tmp}, s{st}, v{tmp}")
    a(f"ds_read_b64 v[{stat}:{stat+1}], v{tmp}")
    qkv_epi(0)
    a("s_waitcnt lgkmcnt(0)")
    a(f"v_mul_f32 v{mean}, {hexf(1/512)}, v{stat}")
    a(f"v_mul_f32 v{stat+1}, {hexf(1/512)}, v{stat+1}")
    a(f"v_fma_f32 v{stat+1}, -v{mean}, v{mean}, v{stat+1}")
    a(f"v_max_f32 v{stat+1}, 0, v{stat+1}")
    a(f"v_add_f32 v{stat+1}, {hexf(1e-5)}, v{stat+1}")
    a(f"v_rsq_f32 v{rstd}, v{stat+1}")
    a(f"s_lshl_b32 s{st}, s{s_j}, 1")
    a(f"s_lshl_b32 s{st+1}, s{s_mbg}, 5")
    a(f"s_add_u32 s{st}, s{st}, s{st+1}")
    a(f"s_lshl_b32 s{st}, s{st}, 10")
    a(f"s_add_u32 s{st}, s{st}, {WS_H}")
    c = g.accreg(1, 0)
    for r in range(16):
        a(f"v_fma_f32 v{c+r}, -v{mean}, v{csr+r}, v{c+r}")
    for r in range(16):
        a(f"v_mul_f32 v{c+r}, v{c+r}, v{rstd}")
    gelu_vec(a, [c + r for r in range(16)], [cst + r for r in range(16)], vk1, s_k2)
    for t in range(2):
        p = pk + 4 * t
        pack8(a, c + 8 * t, p)
        a(f"buffer_store_dwordx4 v[{p}:{p+3}], v{vo}, s[{WSP}:{WSP+3}], s{st} offen offset:{t*1024}")
    a.label(ldone)
    T.stamp()
    if stamps:
        a("s_waitcnt vmcnt(0)")
        T.stamp()
    T.store(WSP, tmp, st, s_wave)
    a.label(end)
    a("s_endpgm")
    return dict(name=name, vgpr=168, sgpr=100, grid=256, block=768, lds=SLOTS * STB)
```

```python
from asmlib import *
from common import *
from gemm import VMQ

ATT_LDS = 65536 + 8192
ADBG = dict(noread=False)

def attn_role(a, V, S, *, vlane, s_wave, s_unit, WSP, T=None, ostore_flags="", lag=4, pre_wait=None, prog=None, cluster=False, toggle=0, pf=None):
    tmp = V.alloc("atmp", 4)
    st = S.alloc("ast", 6)
    s_head = S.alloc("head"); s_mb = S.alloc("amb"); s_ko = S.alloc("ko"); s_m0 = S.alloc("am0"); s_cnt = S.alloc("acnt")
    s_msk = S.alloc("amsk", 2, 2)
    qf = V.alloc("qf", 4, 4); negm = V.alloc("negm", 16, 4); Sb = V.alloc("S", 32, 4); P = V.alloc("P", 8, 4)
    O = V.alloc("O", 16, 4); kf = V.alloc("kf", 8, 4); vf = V.alloc("vf", 16, 4)
    vK = V.alloc("vK"); vV = V.alloc("vV"); vVp = V.alloc("vVp"); vl16 = V.alloc("vl16"); vVg = V.alloc("vVg")
    vinc = V.alloc("vinc"); vmsk = V.alloc("vmsk")
    CH = 16384
    if pf:
        s_pq = S.alloc("pfq", 4, 4); s_po = S.alloc("pfo"); s_sl = S.alloc("pfs"); vjunk = V.alloc("pfj", 4, 4)
    def pf_load(k):
        a(f"buffer_load_dwordx4 v[{vjunk}:{vjunk+3}], v{vl16}, s[{s_pq}:{s_pq+3}], s{s_po} offen offset:{k * 1024}")
    def pf_set(srd):
        for w in range(4): a(f"s_mov_b32 s{s_pq+w}, s{srd+w}" if w < 3 else f"s_mov_b32 s{s_pq+3}, 0x00020000")
    a(f"s_and_b32 s{st}, s{s_unit}, 7")
    a(f"s_lshr_b32 s{st+1}, s{s_unit}, 3")
    a(f"s_lshl_b32 s{s_head}, s{st}, 2")
    a(f"s_lshr_b32 s{st+2}, s{st+1}, 3")
    a(f"s_add_u32 s{s_head}, s{s_head}, s{st+2}")
    a(f"s_and_b32 s{s_mb}, s{st+1}, 7")
    a(f"s_lshl_b32 s{s_mb}, s{s_mb}, 3")
    a(f"s_add_u32 s{s_mb}, s{s_mb}, s{s_wave}")
    a(f"v_lshlrev_b32 v{vl16}, 4, v{vlane}")
    if pf:
        a(f"s_lshl_b32 s{s_sl}, s{st+1}, 3")
        a(f"s_add_u32 s{s_sl}, s{s_sl}, s{s_wave}")
        a(f"s_mul_i32 s{s_po}, s{s_sl}, 7168")
        pf_set(pf['W3'])
    a(f"s_lshl_b32 s{s_ko}, s{s_head}, 16")
    a(f"s_lshl_b32 s{s_m0}, s{s_wave}, 10")
    a(f"s_add_u32 s{s_ko}, s{s_ko}, s{s_m0}")
    a(f"s_add_u32 s{s_ko}, s{s_ko}, {WS_K}")
    if pre_wait: pre_wait(dict(s_head=s_head, s_mb=s_mb, tmp=tmp, st=st))
    def dma(c):
        a(f"s_add_u32 m0, s{s_m0}, {(c % 4) * CH}")
        a(f"s_add_u32 s{st+5}, s{s_ko}, {WS_V - WS_K}")
        a(f"buffer_load_dwordx4 v{vl16}, s[{WSP}:{WSP+3}], s{s_ko} offen lds")
        a(f"s_add_u32 m0, m0, 8192")
        a(f"s_add_u32 s{s_ko}, s{s_ko}, 8192")
        a(f"buffer_load_dwordx4 v{vl16}, s[{WSP}:{WSP+3}], s{st+5} offen lds")
    dma(0)
    a(f"s_lshl_b32 s{st}, s{s_head}, 6")
    a(f"s_add_u32 s{st}, s{st}, s{s_mb}")
    a(f"s_lshl_b32 s{st}, s{st}, 10")
    a(f"buffer_load_dwordx4 v[{qf}:{qf+3}], v{vl16}, s[{WSP}:{WSP+3}], s{st} offen")
    dma(1)
    dma(2)
    for r in range(4):
        a(f"v_mov_b32 v{vf+r}, 0x3f803f80")
    a(f"s_add_u32 s{st}, s{s_m0}, 65536")
    a(f"v_add_u32 v{tmp}, s{st}, v{vl16}")
    a(f"ds_write_b128 v{tmp}, v[{vf}:{vf+3}]")
    a(f"v_and_b32 v{tmp}, 31, v{vlane}")
    a(f"v_lshrrev_b32 v{tmp+1}, 5, v{vlane}")
    a(f"v_lshlrev_b32 v{vVg}, 8, v{tmp+1}")
    a(f"v_lshl_add_u32 v{vVg}, v{tmp}, 4, v{vVg}")
    a(f"v_cmp_gt_u32 vcc, 16, v{tmp}")
    a(f"v_add_u32 v{vV}, 8192, v{vVg}")
    a(f"v_mov_b32 v{tmp+2}, 65536")
    a(f"v_cndmask_b32 v{vV}, v{tmp+2}, v{vV}, vcc")
    a(f"v_mov_b32 v{tmp+2}, {CH}")
    a(f"v_cndmask_b32 v{vinc}, 0, v{tmp+2}, vcc")
    a(f"v_mov_b32 v{tmp+2}, 0xffff")
    a(f"v_cndmask_b32 v{vmsk}, -1, v{tmp+2}, vcc")
    a(f"v_mov_b32 v{vK}, v{vl16}")
    a(f"s_mov_b32 s{s_msk}, 0x0000ffff")
    a(f"s_mov_b32 s{s_msk+1}, 0x0000ffff")
    for r in range(16):
        a(f"v_mov_b32 v{O+r}, 0")
    KF = lambda i: kf + 4 * (i % 2)
    VF = lambda i: vf + 8 * (i % 2)
    SS = lambda i: Sb + 16 * (i % 2)
    def readK(i):
        if ADBG['noread'] and i > 1: return
        a(f"ds_read_b128 v[{KF(i)}:{KF(i)+3}], v{vK} offset:{(i % 8) * 1024}")
    def readV(i, prev=False):
        if ADBG['noread'] and i > 1: return
        t = i % 8
        r = vVp if prev else vV
        a(f"ds_read_b128 v[{VF(i)}:{VF(i)+3}], v{r} offset:{t * 1024}")
        a(f"ds_read_b128 v[{VF(i)+4}:{VF(i)+7}], v{r} offset:{t * 1024 + 512}")
    def qk(i, c=None):
        cc = f"v[{negm}:{negm+15}]" if c is None else c
        a(f"v_mfma_f32_32x32x16_bf16 v[{SS(i)}:{SS(i)+15}], v[{KF(i)}:{KF(i)+3}], v[{qf}:{qf+3}], {cc}")
    def pv(i, t):
        a(f"v_mfma_f32_32x32x16_bf16 v[{O}:{O+15}], v[{VF(i)+4*t}:{VF(i)+4*t+3}], v[{P+4*t}:{P+4*t+3}], v[{O}:{O+15}]")
    def softmax_pv_simple(i):
        s = SS(i)
        E = lambda r: a(f"v_exp_f32 v{s+r}, v{s+r}")
        C = lambda p: a(f"v_cvt_pk_bf16_f32 v{P+p}, v{s+2*p}, v{s+2*p+1}")
        E(0); E(1); E(2); C(0); E(3); E(4); C(1); E(5); E(6); C(2); E(7); E(8); C(3); E(9); E(10)
        pv(i, 0)
        C(4); E(11); E(12); C(5); E(13); E(14); C(6); E(15)
        a("s_nop 0")
        C(7)
        a("s_nop 1")
        pv(i, 1)
    def maxcalc(src, dst):
        a(f"v_max3_f32 v{dst}, v{src}, v{src+1}, v{src+2}")
        for r in range(3, 15, 2):
            a(f"v_max3_f32 v{dst}, v{dst}, v{src+r}, v{src+r+1}")
        a(f"v_max_f32 v{dst}, v{dst}, v{src+15}")
    def set_negm(mreg):
        a(f"v_mov_b32 v{tmp+1}, v{mreg}")
        a("s_nop 1")
        a(f"v_permlane32_swap_b32 v{tmp+1}, v{mreg}")
        a(f"v_max_f32 v{mreg}, v{mreg}, v{tmp+1}")
        for r in range(16):
            a(f"v_sub_f32 v{negm+r}, 0, v{mreg}")
    a("s_waitcnt vmcnt(4) lgkmcnt(0)")
    a("s_barrier")
    if T: T.stamp()
    readK(0); readK(1); readV(0)
    a("s_waitcnt lgkmcnt(3)")
    qk(0, "0")
    a("s_nop 15")
    maxcalc(SS(0), tmp)
    set_negm(tmp)
    a("s_nop 1")
    qk(0)
    a("s_nop 7")
    a("s_nop 3")
    pend = [None]
    def iteration(i, first_in_body=False, last=63, extra=None):
        s_ = SS(i); sp = SS(i - 1)
        E = lambda r: a(f"v_exp_f32 v{s_+r}, v{s_+r}")
        C = lambda p: a(f"v_cvt_pk_bf16_f32 v{P+p}, v{s_+2*p}, v{s_+2*p+1}")
        Cp = lambda p: a(f"v_cvt_pk_bf16_f32 v{P+p}, v{sp+2*p}, v{sp+2*p+1}")
        hasK = i + 2 <= last; hasV = i + 1 <= last
        nspill = lag // 2
        ev = {}
        def at(e, f): ev.setdefault(e, []).append(f)
        for p in range(8):
            e = 2 * p + 1 + lag
            if e < 16: at(e, lambda p=p: C(p))
            elif i > 0: at(e - 16, lambda p=p: Cp(p))
        eq = max(2 * 7 + 1 + lag - 16, 0)
        def do_qk():
            a("s_waitcnt lgkmcnt(0)")
            if i + 1 <= last: qk(i + 1)
        at(eq, do_qk)
        def do_pv1():
            if i > 0: pv(i - 1, 1)
            if hasV: readV(i + 1, prev=first_in_body)
            if hasK: readK(i + 2)
        at(eq + 3, do_pv1)
        at(min(2 * 3 + 1 + lag + 2, 15), lambda: pv(i, 0))
        if extra: at(eq + 6, extra)
        for e in range(16):
            E(e)
            for f in ev.get(e, []): f()
        def fin():
            a("s_nop 0")
            for p in range(8 - nspill, 8): C(p)
            a("s_nop 1")
            pv(i, 1)
        pend[0] = fin
    def iteration_c(i, first_in_body=False, last=63, extra=None):
        s_ = SS(i)
        E = lambda r: a(f"v_exp_f32 v{s_+r}, v{s_+r}")
        C = lambda p: a(f"v_cvt_pk_bf16_f32 v{P+p}, v{s_+2*p}, v{s_+2*p+1}")
        hasK = i + 2 <= last; hasV = i + 1 <= last
        E(0); E(1)
        if i > 0: pv(i - 1, 0); pv(i - 1, 1)
        a("s_waitcnt lgkmcnt(0)")
        if i + 1 <= last: qk(i + 1)
        if hasV: readV(i + 1, prev=first_in_body)
        if hasK: readK(i + 2)
        E(2); E(3); C(0)
        for p in range(1, 7):
            E(2 * p + 2); E(2 * p + 3); C(p)
            if extra and p == 3: extra()
        a("s_nop 0")
        C(7)
        def fin():
            a("s_nop 1")
            pv(i, 0); pv(i, 1)
        pend[0] = fin
    if cluster: iteration = iteration_c
    NW = 5 if pf else 2
    base_iter = iteration
    def main_part(phase):
        def iteration(i, **kw):
            if toggle and (i % toggle) == 0:
                a(f"s_setprio {((i // toggle) + phase) & 1}")
            base_iter(i, **kw)
        for i in range(6):
            iteration(i, extra=(lambda i=i: pf_load(i // 2)) if (pf and i % 2 == 1) else None)
        if pf: a(f"s_add_u32 s{s_po}, s{s_po}, 3072")
        s_slot = st + 4
        a(f"s_mov_b32 s{s_cnt}, 7")
        a(f"s_mov_b32 s{s_slot}, {3 * CH}")
        if prog:
            a(f"s_mov_b32 s{prog[2]}, 0")
            a(f"s_mov_b32 s{prog[3]}, 0")
        lab = a.newlabel("attn_loop")
        a.label(lab)
        if prog:
            a(f"s_memtime s[{prog[0]}:{prog[0]+1}]")
            a("s_waitcnt lgkmcnt(0)")
            a(f"s_sub_u32 s{prog[2]}, s{prog[2]}, s{prog[0]}")
        a(f"s_waitcnt vmcnt({NW})")
        if prog:
            a(f"s_memtime s[{prog[0]}:{prog[0]+1}]")
            a("s_waitcnt lgkmcnt(0)")
            a(f"s_add_u32 s{prog[2]}, s{prog[2]}, s{prog[0]}")
            a(f"s_sub_u32 s{prog[3]}, s{prog[3]}, s{prog[0]}")
        a("s_barrier")
        if prog:
            a(f"s_memtime s[{prog[0]}:{prog[0]+1}]")
            a("s_waitcnt lgkmcnt(0)")
            a(f"s_add_u32 s{prog[3]}, s{prog[3]}, s{prog[0]}")
        if prog: a(f"s_memrealtime s[{prog[0]}:{prog[0]+1}]")
        a(f"v_mov_b32 v{vVp}, v{vV}")
        a(f"v_add_u32 v{vK}, {CH}, v{vK}")
        a(f"v_add_u32 v{vV}, v{vinc}, v{vV}")
        a(f"v_and_b32 v{vK}, 0xffff, v{vK}")
        a(f"v_and_b32 v{vV}, v{vmsk}, v{vV}")
        PF = lambda k: (lambda: pf_load(k)) if pf else None
        def pf_next():
            a(f"s_mul_i32 s{st}, s{s_sl}, 7168")
            a(f"s_add_u32 s{st+1}, s{st}, 4096")
            a(f"s_lshl_b32 s{st+2}, s{s_sl}, 11")
            a(f"s_cmp_eq_u32 s{s_cnt}, 7")
            a(f"s_cselect_b32 s{s_po}, s{st}, 0x7f000000")
            a(f"s_cmp_eq_u32 s{s_cnt}, 6")
            a(f"s_cselect_b32 s{s_po}, s{st+1}, s{s_po}")
            a(f"s_cmp_eq_u32 s{s_cnt}, 5")
            a(f"s_cselect_b32 s{s_po}, s{st+2}, s{s_po}")
            for w in range(3):
                a(f"s_cselect_b32 s{s_pq+w}, s{pf['WO']+w}, s{pf['W4']+w}")
        def dmaK():
            a(f"s_cmp_lt_u32 s{s_cnt}, 3")
            a(f"s_cselect_b32 s{s_ko}, 0x7f000000, s{s_ko}")
            a(f"s_add_u32 m0, s{s_m0}, s{s_slot}")
            a(f"s_add_u32 s{st+5}, s{s_ko}, {WS_V - WS_K}")
            a(f"buffer_load_dwordx4 v{vl16}, s[{WSP}:{WSP+3}], s{s_ko} offen lds")
        def dmaV():
            a(f"s_add_u32 m0, m0, 8192")
            a(f"s_add_u32 s{s_ko}, s{s_ko}, 8192")
            a(f"buffer_load_dwordx4 v{vl16}, s[{WSP}:{WSP+3}], s{st+5} offen lds")
            a(f"s_add_u32 s{s_slot}, s{s_slot}, {CH}")
            a(f"s_and_b32 s{s_slot}, s{s_slot}, 0xffff")
        for k in range(8):
            iteration(6 + k, first_in_body=(k == 0), extra={0: PF(0), 2: PF(1), 4: PF(2), 6: PF(3), 7: pf_next if pf else None, 1: dmaK, 3: dmaV, 5: (lambda: a(f"s_mov_b32 m0, s{s_cnt}\ns_nop 0\nv_writelane_b32 v{prog[1]}, s{prog[0]}, m0")) if prog else None}.get(k))
        a(f"s_sub_u32 s{s_cnt}, s{s_cnt}, 1")
        a(f"s_cmp_lg_u32 s{s_cnt}, 0")
        a(f"s_cbranch_scc1 {lab}")
        iteration(62); iteration(63)
        pend[0]()

    if toggle:
        lp1 = a.newlabel("attn_p1"); lpj = a.newlabel("attn_pj")
        a(f"s_cmp_ge_u32 s{s_wave}, 4")
        a(f"s_cbranch_scc1 {lp1}")
        main_part(0)
        a(f"s_branch {lpj}")
        a.label(lp1)
        main_part(1)
        a.label(lpj)
        a("s_setprio 0")
    else:
        main_part(0)
    if T: T.stamp()
    lok = a.newlabel("attn_ok")
    a("s_nop 15")
    a(f"v_mov_b32 v{tmp+1}, {hexf(2.0**60)}")
    a(f"v_cmp_nlt_f32 vcc, v{O+8}, v{tmp+1}")
    a("s_nop 1")
    a("s_cmp_eq_u64 vcc, 0")
    a(f"s_cbranch_scc1 {lok}")
    a(f"s_lshl_b32 s{st}, s{s_head}, 16")
    a(f"s_add_u32 s{st}, s{st}, {WS_K}")
    a(f"s_mov_b32 s{s_cnt}, 64")
    a(f"v_mov_b32 v{tmp}, 0xff800000")
    lm = a.newlabel("attn_fbmax")
    a.label(lm)
    a(f"buffer_load_dwordx4 v[{KF(0)}:{KF(0)+3}], v{vl16}, s[{WSP}:{WSP+3}], s{st} offen")
    a(f"s_add_u32 s{st}, s{st}, 1024")
    a("s_waitcnt vmcnt(0)")
    qk(0, "0")
    a("s_nop 15")
    maxcalc(SS(0), tmp + 2)
    a(f"v_max_f32 v{tmp}, v{tmp}, v{tmp+2}")
    a(f"s_sub_u32 s{s_cnt}, s{s_cnt}, 1")
    a(f"s_cmp_lg_u32 s{s_cnt}, 0")
    a(f"s_cbranch_scc1 {lm}")
    set_negm(tmp)
    for r in range(16):
        a(f"v_mov_b32 v{O+r}, 0")
    a(f"s_lshl_b32 s{st}, s{s_head}, 16")
    a(f"s_add_u32 s{st}, s{st}, {WS_K}")
    a(f"s_mov_b32 s{s_cnt}, 64")
    lf = a.newlabel("attn_fb")
    a.label(lf)
    a(f"s_add_u32 s{st+1}, s{st}, {WS_V - WS_K}")
    a(f"buffer_load_dwordx4 v[{KF(0)}:{KF(0)+3}], v{vl16}, s[{WSP}:{WSP+3}], s{st} offen")
    a(f"s_mov_b64 exec, s[{s_msk}:{s_msk+1}]")
    a(f"buffer_load_dwordx4 v[{VF(0)}:{VF(0)+3}], v{vVg}, s[{WSP}:{WSP+3}], s{st+1} offen")
    a(f"buffer_load_dwordx4 v[{VF(0)+4}:{VF(0)+7}], v{vVg}, s[{WSP}:{WSP+3}], s{st+1} offen offset:512")
    a(f"s_mov_b64 exec, -1")
    a(f"s_add_u32 s{st}, s{st}, 1024")
    a("s_waitcnt vmcnt(0)")
    qk(0)
    a("s_nop 15")
    softmax_pv_simple(0)
    a("s_nop 7")
    a(f"s_sub_u32 s{s_cnt}, s{s_cnt}, 1")
    a(f"s_cmp_lg_u32 s{s_cnt}, 0")
    a(f"s_cbranch_scc1 {lf}")
    a("s_nop 15")
    a.label(lok)
    a(f"v_rcp_f32 v{tmp}, v{O+8}")
    a(f"s_lshl_b32 s{st}, s{s_mb}, 5")
    a(f"s_add_u32 s{st}, s{st}, s{s_head}")
    a(f"s_lshl_b32 s{st}, s{st}, 10")
    a(f"s_add_u32 s{st}, s{st}, {WS_O}")
    for r in range(8):
        a(f"v_mul_f32 v{O+r}, v{O+r}, v{tmp}")
    pack8(a, O, P)
    a(f"buffer_store_dwordx4 v[{P}:{P+3}], v{vl16}, s[{WSP}:{WSP+3}], s{st} offen {ostore_flags}".rstrip())
    return dict(s_mb=s_mb, s_head=s_head, tmp=tmp, st=st)

def gen_attn(a, name="attn_kernel", stamps=False, prio=False, lag=4, cluster=False, toggle=0):
    kernel_header(a, name)
    V = Regs(1, 128, 'v'); S = Regs(20, 60, 's')
    end = a.newlabel("at_end")
    a("s_cmp_ge_u32 s2, 256")
    a(f"s_cbranch_scc1 {end}")
    a("s_load_dwordx2 s[4:5], s[0:1], 88")
    T = Stamps(a, 60, 16, stamps)
    T.stamp()
    T.rstamp()
    vlane = V.alloc("lane"); s_wave = S.alloc("wave")
    a(f"v_and_b32 v{vlane}, 63, v0")
    a(f"v_lshrrev_b32 v2, 6, v0")
    a("s_nop 0")
    a(f"v_readfirstlane_b32 s{s_wave}, v2")
    a("s_waitcnt lgkmcnt(0)")
    WSP = 16
    srd(a, WSP, 4, WS_SIZE)
    if prio:
        lp = a.newlabel("prio")
        a(f"s_cmp_lt_u32 s{s_wave}, 4")
        a(f"s_cbranch_scc1 {lp}")
        a("s_setprio 1")
        a.label(lp)
    r = attn_role(a, V, S, vlane=vlane, s_wave=s_wave, s_unit=2, WSP=WSP, T=T, lag=lag, cluster=cluster, toggle=toggle)
    T.stamp()
    T.rstamp()
    T.store(WSP, r['tmp'], r['st'], s_wave, slot=1)
    a.label(end)
    a("s_endpgm")
    return dict(name=name, vgpr=V.high, sgpr=100, grid=256, block=512, lds=ATT_LDS)
```

```python
from asmlib import *
from common import *
from gemm import VMQ
from gemm2 import G2
from broles import exchange_wk, unpack8, halves_sum, Ctx, std_prologue, RING

def P2(r): return f"v[{r}:{r+1}]"

def gelu_pk(a, xs, ts, K):
    for x, t in zip(xs, ts): a(f"v_pk_mul_f32 {P2(t)}, {P2(x)}, {P2(x)}")
    for x, t in zip(xs, ts): a(f"v_pk_fma_f32 {P2(t)}, {P2(t)}, s[{K['s_k2']}:{K['s_k2']+1}], {P2(K['v_k1'])}")
    for x, t in zip(xs, ts): a(f"v_pk_mul_f32 {P2(t)}, {P2(t)}, {P2(x)}")
    for x, t in zip(xs, ts): a(f"v_exp_f32 v{t}, v{t}"); a(f"v_exp_f32 v{t+1}, v{t+1}")
    for x, t in zip(xs, ts): a(f"v_pk_add_f32 {P2(t)}, {P2(t)}, s[{K['s_one']}:{K['s_one']+1}]")
    for x, t in zip(xs, ts): a(f"v_rcp_f32 v{t}, v{t}"); a(f"v_rcp_f32 v{t+1}, v{t+1}")
    for x, t in zip(xs, ts): a(f"v_pk_mul_f32 {P2(x)}, {P2(x)}, {P2(t)}")

def bctx(a, V, S, vlane, s_wave, s_unit):
    C = Ctx()
    C.vlane = vlane; C.s_wave = s_wave; C.s_unit = s_unit
    C.tmp = V.alloc("btmp", 8, 2); C.st = S.alloc("bst", 6)
    C.vl16 = V.alloc("bl16"); C.vh = V.alloc("bh"); C.vl32 = V.alloc("bl32")
    C.xa = V.alloc("xa64", 2); C.wa = V.alloc("wa64", 2); C.wv = V.alloc("wv64"); C.lp = V.alloc("lp"); C.vr = V.alloc("vr")
    for n in ("wn", "wm", "wk", "mt", "nt", "mq", "mbg", "kb", "m0w", "xo", "wo", "ri", "rj", "rt", "cnt"):
        setattr(C, "s_" + n, S.alloc("b" + n))
    t = C.tmp; st = C.st
    a(f"v_lshlrev_b32 v{C.vl16}, 4, v{vlane}")
    a(f"v_bfe_u32 v{t}, v{vlane}, 4, 1")
    a(f"v_lshlrev_b32 v{t}, 2, v{t}")
    a(f"v_and_b32 v{t+1}, 7, v{vlane}")
    a(f"v_xor_b32 v{t}, v{t}, v{t+1}")
    a(f"v_lshrrev_b32 v{t+1}, 3, v{vlane}")
    a(f"v_lshlrev_b32 v{t+1}, 10, v{t+1}")
    a(f"v_lshl_add_u32 v{C.wv}, v{t}, 4, v{t+1}")
    a(f"s_lshl_b32 s{C.s_m0w}, s{s_wave}, 10")
    a(f"s_and_b32 s{C.s_wn}, s{s_wave}, 1")
    a(f"s_bfe_u32 s{C.s_wm}, s{s_wave}, 0x10001")
    a(f"s_lshr_b32 s{C.s_wk}, s{s_wave}, 2")
    a(f"s_and_b32 s{st}, s{s_unit}, 7")
    a(f"s_lshr_b32 s{st+1}, s{s_unit}, 3")
    a(f"s_and_b32 s{C.s_mq}, s{st+1}, 3")
    a(f"s_lshl_b32 s{C.s_mt}, s{st}, 2")
    a(f"s_add_u32 s{C.s_mt}, s{C.s_mt}, s{C.s_mq}")
    a(f"s_lshr_b32 s{C.s_nt}, s{st+1}, 2")
    a(f"s_lshl_b32 s{C.s_mbg}, s{C.s_mt}, 1")
    a(f"s_add_u32 s{C.s_mbg}, s{C.s_mbg}, s{C.s_wm}")
    a(f"s_lshl_b32 s{C.s_kb}, s{C.s_nt}, 2")
    a(f"s_lshl_b32 s{st}, s{C.s_wn}, 1")
    a(f"s_add_u32 s{C.s_kb}, s{C.s_kb}, s{st}")
    a(f"s_add_u32 s{C.s_kb}, s{C.s_kb}, s{C.s_wk}")
    a(f"v_lshrrev_b32 v{C.vh}, 5, v{vlane}")
    a(f"v_and_b32 v{C.vl32}, 31, v{vlane}")
    return C

def bctx_reads(a, C):
    t = C.tmp; st = C.st; vlane = C.vlane
    a(f"s_lshl_b32 s{st}, s{C.s_wm}, 12")
    a(f"s_lshl_b32 s{st+1}, s{C.s_wk}, 11")
    a(f"s_add_u32 s{st}, s{st}, s{st+1}")
    a(f"v_add_u32 v{C.xa}, s{st}, v{C.vl16}")
    a(f"v_add_u32 v{C.xa+1}, 0x10000, v{C.xa}")
    a(f"v_bfe_u32 v{C.vr}, v{vlane}, 2, 2")
    a(f"v_and_b32 v{t}, 3, v{vlane}")
    a(f"v_lshlrev_b32 v{t}, 3, v{t}")
    a(f"v_bfe_u32 v{t+1}, v{vlane}, 4, 1")
    a(f"v_lshl_add_u32 v{C.lp}, v{t+1}, 5, v{t}")
    a(f"v_lshl_add_u32 v{t+1}, v{C.vh}, 2, v{C.vr}")
    a(f"s_lshl_b32 s{st}, s{C.s_wk}, 12")
    a(f"v_lshl_add_u32 v{t+2}, v{t+1}, 7, v{C.lp}")
    a(f"v_lshrrev_b32 v{t}, 1, v{C.vr}")
    a(f"v_xor_b32 v{t}, s{C.s_wn}, v{t}")
    a(f"v_lshl_add_u32 v{t+2}, v{t}, 6, v{t+2}")
    a(f"v_add_u32 v{C.wa}, s{st}, v{t+2}")
    a(f"v_add_u32 v{C.wa+1}, 0x10000, v{C.wa}")

def mk64(a, V, C, vmq, name, K, xv, rot):
    acc = V.alloc(name + "acc", 16, 4); xf = V.alloc(name + "xf", 12, 4); wf = V.alloc(name + "wf", 12, 4)
    return G2(a, vmq, name=name, TN=64, TM=64, wn=2, wm=2, wk=2, KC=64, K=K, slots=5, acc=acc, xf=xf, wf=wf,
              xa=[C.xa, C.xa + 1], wa=[[C.wa, C.wa + 1]], xv=xv, wv=C.wv, s_xo=C.s_xo, s_wo=C.s_wo, s_m0=C.s_m0w,
              xstep=4096, wstep=65536, rot=(C.s_ri, C.s_rj, C.s_rt) if rot else None)

def set_offsets64(a, C, xbase, kbtot, r0=None):
    st = C.st
    a(f"s_lshl_b32 s{st}, s{C.s_mt}, 1")
    a(f"s_add_u32 s{st}, s{st}, s{C.s_wk}")
    a(f"s_mul_i32 s{st}, s{st}, {kbtot}")
    a(f"s_and_b32 s{st+1}, s{C.s_wave}, 3")
    a(f"s_add_u32 s{st}, s{st}, s{st+1}")
    a(f"s_lshl_b32 s{st}, s{st}, 10")
    a(f"s_add_u32 s{C.s_xo}, s{st}, {xbase}")
    a(f"s_lshl_b32 s{C.s_wo}, s{C.s_wave}, 13")
    a(f"s_lshl_b32 s{st}, s{C.s_nt}, 7")
    a(f"s_add_u32 s{C.s_wo}, s{C.s_wo}, s{st}")
    if r0 is not None:
        a(f"s_mov_b32 s{C.s_ri}, s{r0}")
        a(f"s_mov_b32 s{C.s_rj}, s{r0}")
        a(f"s_lshl_b32 s{st}, s{r0}, 12")
        a(f"s_add_u32 s{C.s_xo}, s{C.s_xo}, s{st}")
        a(f"s_lshl_b32 s{st}, s{r0}, 16")
        a(f"s_add_u32 s{C.s_wo}, s{C.s_wo}, s{st}")

def role_g3(a, V, S, C, SR, store_flags="", publish=None, pre=None):
    vm, sm = V.mark(), S.mark()
    vmq = VMQ(); st = C.st; tmp = C.tmp
    xv = V.alloc("g3xv", 4)
    g = mk64(a, V, C, vmq, "g3", 512, [xv + i for i in range(4)], rot=False)
    set_offsets64(a, C, WS_H - 32768, 32)
    g.issue_w(0, SR['W2']); g.issue_w(1, SR['W2'])
    a(f"v_lshlrev_b32 v{tmp+2}, 9, v{C.vh}")
    for gi, s_ in enumerate([-1, 1, -2, 2]):
        a(f"v_add_u32 v{tmp}, {32 + s_}, v{C.vl32}")
        a(f"v_lshrrev_b32 v{tmp+1}, 5, v{tmp}")
        a(f"v_lshl_add_u32 v{tmp+1}, v{tmp+1}, 15, v{tmp+2}")
        a(f"v_and_b32 v{tmp}, 31, v{tmp}")
        a(f"v_lshl_add_u32 v{xv+gi}, v{tmp}, 4, v{tmp+1}")
    lnb = a.newlabel("g3_nb"); lhi = a.newlabel("g3_hi")
    a(f"s_lshl_b32 s{st}, s{C.s_mt}, 1")
    a(f"s_add_u32 s{st}, s{st}, s{C.s_wk}")
    a(f"s_cmp_eq_u32 s{st}, 63")
    a(f"s_cbranch_scc1 {lhi}")
    a(f"s_cmp_lg_u32 s{st}, 0")
    a(f"s_cbranch_scc1 {lnb}")
    a(f"v_mov_b32 v{tmp}, 0x7f000000")
    a(f"v_cmp_gt_u32 vcc, 1, v{C.vl32}")
    a("s_nop 1")
    a(f"v_cndmask_b32 v{xv}, v{xv}, v{tmp}, vcc")
    a(f"v_cmp_gt_u32 vcc, 2, v{C.vl32}")
    a("s_nop 1")
    a(f"v_cndmask_b32 v{xv+2}, v{xv+2}, v{tmp}, vcc")
    a(f"s_branch {lnb}")
    a.label(lhi)
    a(f"v_mov_b32 v{tmp}, 0x7f000000")
    a(f"v_cmp_lt_u32 vcc, 30, v{C.vl32}")
    a("s_nop 1")
    a(f"v_cndmask_b32 v{xv+1}, v{xv+1}, v{tmp}, vcc")
    a(f"v_cmp_lt_u32 vcc, 29, v{C.vl32}")
    a("s_nop 1")
    a(f"v_cndmask_b32 v{xv+3}, v{xv+3}, v{tmp}, vcc")
    a.label(lnb)
    g.issue_x(0, SR['WS']); g.issue_x(1, SR['WS'])
    for s in range(2, 5):
        g.issue_x(s, SR['WS']); g.issue_w(s, SR['W2'])
    xr = V.alloc("xr", 4, 2); gw = V.alloc("gw", 4, 2); R = V.alloc("R", 8, 4); X = V.alloc("X", 8, 4); G = V.alloc("G", 8, 4)
    pk = V.alloc("pk", 4, 4); sv = V.alloc("sv", 4, 4); s2 = V.alloc("s2", 6, 2)
    a(f"s_lshl_b32 s{st}, s{C.s_kb}, 5")
    a(f"s_lshl_b32 s{st+1}, s{C.s_mbg}, 15")
    a(f"s_add_u32 s{st+1}, s{st+1}, s{st}")
    a(f"v_lshlrev_b32 v{tmp}, 3, v{C.vh}")
    a(f"v_lshl_add_u32 v{tmp+1}, v{C.vl32}, 10, v{tmp}")
    a(f"buffer_load_dwordx2 v[{xr}:{xr+1}], v{tmp+1}, s[{SR['X']}:{SR['X']+3}], s{st+1} offen")
    a(f"buffer_load_dwordx2 v[{xr+2}:{xr+3}], v{tmp+1}, s[{SR['X']}:{SR['X']+3}], s{st+1} offen offset:16")
    a(f"buffer_load_dwordx2 v[{gw}:{gw+1}], v{tmp}, s[{SR['GW']}:{SR['GW']+3}], s{st} offen")
    a(f"buffer_load_dwordx2 v[{gw+2}:{gw+3}], v{tmp}, s[{SR['GW']}:{SR['GW']+3}], s{st} offen offset:16")
    for _ in range(4): vmq.issue('epi')
    bctx_reads(a, C)
    g.mainloop(SR['WS'], SR['W2'], issued=5)
    vmq.wait(a, {'epi'})
    unpack8(a, xr, X); unpack8(a, gw, G)
    a("s_barrier")
    exchange_wk(a, g, R, tmp, st, C.vl16, C.s_wave, C.s_wk)
    for r in range(0, 8, 2): a(f"v_pk_add_f32 {P2(R+r)}, {P2(R+r)}, {P2(X+r)}")
    pack8(a, R, pk)
    a(f"s_lshl_b32 s{st}, s{C.s_mbg}, 5")
    a(f"s_add_u32 s{st}, s{st}, s{C.s_kb}")
    a(f"s_lshl_b32 s{st}, s{st}, 10")
    a(f"s_add_u32 s{st}, s{st}, {WS_X1}")
    a(f"buffer_store_dwordx4 v[{pk}:{pk+3}], v{C.vl16}, s[{SR['WS']}:{SR['WS']+3}], s{st} offen {store_flags}".rstrip())
    unpack8(a, pk, R)
    a(f"v_pk_add_f32 {P2(s2)}, {P2(R)}, {P2(R+2)}")
    a(f"v_pk_mul_f32 {P2(s2+2)}, {P2(R)}, {P2(R)}")
    a(f"v_pk_mul_f32 {P2(s2+4)}, {P2(X)}, {P2(G)}")
    for r in range(2, 8, 2):
        if r >= 4: a(f"v_pk_add_f32 {P2(s2)}, {P2(s2)}, {P2(R+r)}")
        a(f"v_pk_fma_f32 {P2(s2+2)}, {P2(R+r)}, {P2(R+r)}, {P2(s2+2)}")
        a(f"v_pk_fma_f32 {P2(s2+4)}, {P2(X+r)}, {P2(G+r)}, {P2(s2+4)}")
    for c in range(3): a(f"v_add_f32 v{sv+c}, v{s2+2*c}, v{s2+2*c+1}")
    a(f"s_lshl_b32 s{st}, s{C.s_wk}, 1")
    a(f"s_add_u32 s{st}, s{st}, s{C.s_wn}")
    a(f"s_lshl_b32 s{st+1}, s{st}, 11")
    a(f"s_lshl_b32 s{st+2}, s{C.s_wm}, 9")
    a(f"s_add_u32 s{st+1}, s{st+1}, s{st+2}")
    a(f"v_lshlrev_b32 v{tmp}, 4, v{C.vl32}")
    a(f"v_lshl_add_u32 v{tmp+1}, v{C.vh}, 10, v{tmp}")
    a(f"v_add_u32 v{tmp+1}, s{st+1}, v{tmp+1}")
    a(f"ds_write_b96 v{tmp+1}, v[{sv}:{sv+2}] offset:16384")
    a("s_waitcnt lgkmcnt(0)")
    a("s_barrier")
    lskip = a.newlabel("g3_nost")
    a(f"s_cmp_lg_u32 s{st}, 0")
    a(f"s_cbranch_scc1 {lskip}")
    a(f"v_lshl_add_u32 v{tmp+1}, v{C.vh}, 12, v{tmp}")
    a(f"v_add_u32 v{tmp+1}, s{st+2}, v{tmp+1}")
    a(f"ds_read_b128 v[{sv}:{sv+3}], v{tmp+1} offset:{16384}")
    a(f"ds_read_b128 v[{R}:{R+3}], v{tmp+1} offset:{16384+1024}")
    a(f"ds_read_b128 v[{R+4}:{R+7}], v{tmp+1} offset:{16384+2048}")
    a(f"ds_read_b128 v[{X}:{X+3}], v{tmp+1} offset:{16384+3072}")
    a("s_waitcnt lgkmcnt(0)")
    for c in range(3):
        a(f"v_add_f32 v{sv+c}, v{sv+c}, v{R+c}")
        a(f"v_add_f32 v{R+4+c}, v{R+4+c}, v{X+c}")
        a(f"v_add_f32 v{sv+c}, v{sv+c}, v{R+4+c}")
    halves_sum(a, [sv, sv + 1, sv + 2], [tmp + 2, tmp + 3, tmp + 4])
    a(f"s_lshl_b32 s{st+1}, s{C.s_mbg}, 12")
    a(f"s_lshl_b32 s{st+2}, s{C.s_nt}, 4")
    a(f"s_add_u32 s{st+1}, s{st+1}, s{st+2}")
    a(f"s_add_u32 s{st+1}, s{st+1}, {WS_ST}")
    a(f"v_lshlrev_b32 v{tmp}, 7, v{C.vl32}")
    a("s_mov_b64 exec, 0xffffffff")
    a(f"buffer_store_dwordx4 v[{sv}:{sv+3}], v{tmp}, s[{SR['WS']}:{SR['WS']+3}], s{st+1} offen {store_flags}".rstrip())
    a("s_mov_b64 exec, -1")
    a.label(lskip)
    if publish: publish()
    V.release(vm); S.release(sm)

def load_rowstats(a, C, SR, s_mbg, dst16):
    st = C.st; tmp = C.tmp
    a(f"s_lshl_b32 s{st}, s{s_mbg}, 12")
    a(f"s_add_u32 s{st}, s{st}, {WS_ST}")
    a(f"v_lshlrev_b32 v{tmp}, 6, v{C.vh}")
    a(f"v_lshl_add_u32 v{tmp}, v{C.vl32}, 7, v{tmp}")
    for p in range(4):
        a(f"buffer_load_dwordx4 v[{dst16+4*p}:{dst16+4*p+3}], v{tmp}, s[{SR['WS']}:{SR['WS']+3}], s{st} offen offset:{16*p}")

def role_g4(a, V, S, C, SR, lskip_label, store_flags="", wait_in=None, publish=None):
    vm, sm = V.mark(), S.mark()
    vmq = VMQ(); st = C.st; tmp = C.tmp
    s_mb = S.alloc("g4mb"); s_nb = S.alloc("g4nb"); s_wn = S.alloc("g4wn"); s_wm = S.alloc("g4wm"); s_mbg = S.alloc("g4mbg")
    C.g4_mb = s_mb; C.g4_nb = s_nb
    a(f"s_lshr_b32 s{st+1}, s{C.s_unit}, 3")
    a(f"s_cmp_ge_u32 s{st+1}, 28")
    a(f"s_cbranch_scc1 {lskip_label}")
    a(f"s_and_b32 s{st}, s{C.s_unit}, 7")
    a(f"s_lshl_b32 s{s_mb}, s{st}, 1")
    a(f"s_and_b32 s{st+2}, s{st+1}, 1")
    a(f"s_add_u32 s{s_mb}, s{s_mb}, s{st+2}")
    a(f"s_lshr_b32 s{s_nb}, s{st+1}, 1")
    a(f"s_lshr_b32 s{s_wn}, s{C.s_wave}, 2")
    a(f"s_and_b32 s{s_wm}, s{C.s_wave}, 3")
    a(f"s_lshl_b32 s{st+2}, s{st+2}, 3")
    a(f"s_add_u32 s{st+2}, s{st+2}, s{s_nb}")
    a(f"s_and_b32 s{C.s_ri}, s{st+2}, 15")
    a(f"s_mov_b32 s{C.s_rj}, s{C.s_ri}")
    acc = V.alloc("g4acc", 32, 4); xf = V.alloc("g4xf", 12, 4); wf = V.alloc("g4wf", 24, 4)
    xa = V.alloc("g4xa", 2); wa = V.alloc("g4wa", 4); wv = V.alloc("g4wv")
    rs = V.alloc("rs", 16, 4); cp = V.alloc("cp", 8, 4); pk = V.alloc("pk", 4, 4); vk1 = V.alloc("vk1", 2, 2)
    s_k2 = S.alloc("k2", 2, 2); s_one = S.alloc("one", 2, 2)
    g = G2(a, vmq, name="g4", TN=128, TM=128, wn=2, wm=4, wk=1, KC=32, K=512, slots=5, acc=acc, xf=xf, wf=wf,
           xa=[xa, xa + 1], wa=[[wa, wa + 1], [wa + 2, wa + 3]], xv=C.vl16, wv=wv, s_xo=C.s_xo, s_wo=C.s_wo, s_m0=C.s_m0w,
           xstep=2048, wstep=32 * 3584, rot=(C.s_ri, C.s_rj, C.s_rt))
    a(f"v_lshrrev_b32 v{tmp}, 4, v{C.vlane}")
    a(f"v_lshlrev_b32 v{tmp+1}, 2, v{tmp}")
    a(f"v_and_b32 v{tmp+2}, 15, v{C.vlane}")
    a(f"v_xor_b32 v{tmp+1}, v{tmp+1}, v{tmp+2}")
    a(f"v_mul_u32_u24 v{tmp}, 3584, v{tmp}")
    a(f"v_lshl_add_u32 v{wv}, v{tmp+1}, 4, v{tmp}")
    a(f"s_mul_i32 s{C.s_wo}, s{C.s_wave}, {4 * 3584}")
    a(f"s_lshl_b32 s{st}, s{s_nb}, 8")
    a(f"s_add_u32 s{C.s_wo}, s{C.s_wo}, s{st}")
    a(f"s_mul_i32 s{st}, s{C.s_ri}, {32 * 3584}")
    a(f"s_add_u32 s{C.s_wo}, s{C.s_wo}, s{st}")
    a(f"s_lshl_b32 s{st}, s{s_mb}, 2")
    a(f"s_lshr_b32 s{st+1}, s{C.s_wave}, 1")
    a(f"s_add_u32 s{st}, s{st}, s{st+1}")
    a(f"s_lshl_b32 s{st}, s{st}, 5")
    a(f"s_and_b32 s{st+1}, s{C.s_wave}, 1")
    a(f"s_add_u32 s{st}, s{st}, s{st+1}")
    a(f"s_lshl_b32 s{st+1}, s{C.s_ri}, 1")
    a(f"s_add_u32 s{st}, s{st}, s{st+1}")
    a(f"s_lshl_b32 s{st}, s{st}, 10")
    a(f"s_add_u32 s{C.s_xo}, s{st}, {WS_X1}")
    NPRE = 5
    for s in range(NPRE): g.issue_w(s, SR['W3'])
    a(f"s_lshl_b32 s{s_mbg}, s{s_mb}, 2")
    a(f"s_add_u32 s{s_mbg}, s{s_mbg}, s{s_wm}")
    a(f"s_lshl_b32 s{st}, s{s_nb}, 9")
    a(f"s_lshl_b32 s{st+1}, s{s_wn}, 8")
    a(f"s_add_u32 s{st}, s{st}, s{st+1}")
    a(f"s_add_u32 s{st}, s{st}, {WS_CS3}")
    a(f"v_lshlrev_b32 v{tmp}, 2, v{C.vlane}")
    for p in range(8):
        a(f"buffer_load_dword v{cp+p}, v{tmp}, s[{SR['WS']}:{SR['WS']+3}], s{st} offen")
        vmq.issue('cp')
        if p < 7: a(f"s_add_u32 s{st}, s{st}, {1792*4}")
    a(f"s_lshl_b32 s{st}, s{s_wm}, 11")
    a(f"v_add_u32 v{xa}, s{st}, v{C.vl16}")
    a(f"v_add_u32 v{xa+1}, 0x10000, v{xa}")
    a(f"v_lshl_add_u32 v{tmp+1}, v{C.vh}, 2, v{C.vr}")
    a(f"v_lshl_add_u32 v{tmp+1}, v{tmp+1}, 8, v{C.lp}")
    for i in range(2):
        a(f"s_lshl_b32 s{st}, s{s_wn}, 1")
        if i: a(f"s_add_u32 s{st}, s{st}, 1")
        a(f"v_xor_b32 v{tmp}, s{st}, v{C.vr}")
        a(f"v_lshl_add_u32 v{wa+2*i}, v{tmp}, 6, v{tmp+1}")
        a(f"v_add_u32 v{wa+2*i+1}, 0x10000, v{wa+2*i}")
    a(f"v_mov_b32 v{vk1}, {hexf(GK1)}")
    a(f"v_mov_b32 v{vk1+1}, {hexf(GK1)}")
    a(f"s_mov_b32 s{s_k2}, {hexf(GK2)}")
    a(f"s_mov_b32 s{s_k2+1}, {hexf(GK2)}")
    a(f"s_mov_b32 s{s_one}, 1.0")
    a(f"s_mov_b32 s{s_one+1}, 1.0")
    if wait_in: wait_in(vmq)
    for s in range(2): g.issue_x(s, SR['WS'])
    load_rowstats(a, C, SR, s_mbg, rs)
    for _ in range(4): vmq.issue('rs')
    for s in range(2, NPRE): g.issue_x(s, SR['WS'])
    g.mainloop(SR['WS'], SR['W3'], issued=NPRE)
    for p in range(0, 8, 4):
        a(f"v_pk_add_f32 {P2(cp+p)}, {P2(cp+p)}, {P2(cp+p+2)}")
    a(f"v_pk_add_f32 {P2(cp)}, {P2(cp)}, {P2(cp+4)}")
    a(f"v_add_f32 v{cp}, v{cp}, v{cp+1}")
    a("s_barrier")
    a(f"s_lshl_b32 s{st}, s{C.s_wave}, 8")
    a(f"v_lshlrev_b32 v{tmp}, 2, v{C.vlane}")
    a(f"v_add_u32 v{tmp}, s{st}, v{tmp}")
    a(f"ds_write_b32 v{tmp}, v{cp}")
    a(f"v_lshlrev_b32 v{tmp+1}, 4, v{C.vh}")
    a(f"v_add_u32 v{tmp+1}, s{st}, v{tmp+1}")
    a(f"v_pk_add_f32 {P2(rs)}, {P2(rs)}, {P2(rs+4)}")
    a(f"v_pk_add_f32 {P2(rs+8)}, {P2(rs+8)}, {P2(rs+12)}")
    a(f"v_pk_add_f32 {P2(rs)}, {P2(rs)}, {P2(rs+8)}")
    halves_sum(a, [rs, rs + 1], [tmp + 2, tmp + 3])
    rstd = rs + 2; nmr = rs + 4
    a("s_waitcnt lgkmcnt(0)")
    csr = wf
    for aa in range(4):
        a(f"ds_read_b128 v[{csr+4*aa}:{csr+4*aa+3}], v{tmp+1} offset:{aa*32}")
    a(f"v_mul_f32 v{rs}, {hexf(1/512)}, v{rs}")
    a(f"v_mul_f32 v{rs+1}, {hexf(1/512)}, v{rs+1}")
    a(f"v_fma_f32 v{rs+1}, -v{rs}, v{rs}, v{rs+1}")
    a(f"v_max_f32 v{rs+1}, 0, v{rs+1}")
    a(f"v_add_f32 v{rs+1}, {hexf(1e-5)}, v{rs+1}")
    a(f"v_rsq_f32 v{rstd}, v{rs+1}")
    a(f"s_mul_i32 s{st}, s{s_mbg}, 112")
    a(f"v_mul_f32 v{nmr}, -v{rs}, v{rstd}")
    a(f"s_lshl_b32 s{st+1}, s{s_nb}, 3")
    a(f"s_add_u32 s{st}, s{st}, s{st+1}")
    a(f"s_lshl_b32 s{st+1}, s{s_wn}, 2")
    a(f"s_add_u32 s{st}, s{st}, s{st+1}")
    a(f"s_lshl_b32 s{st}, s{st}, 10")
    a(f"s_add_u32 s{st}, s{st}, {WS_H3}")
    K = dict(s_k2=s_k2, v_k1=vk1, s_one=s_one)
    for i in range(2):
        a("s_waitcnt lgkmcnt(0)")
        c = g.accreg(i, 0)
        for r in range(0, 16, 2): a(f"v_pk_mul_f32 {P2(c+r)}, {P2(c+r)}, {P2(rstd)} op_sel_hi:[1,0]")
        for r in range(0, 16, 2): a(f"v_pk_fma_f32 {P2(c+r)}, {P2(csr+r)}, {P2(nmr)}, {P2(c+r)} op_sel_hi:[1,0,1]")
        gelu_pk(a, [c + r for r in range(0, 16, 2)], [csr + r for r in range(0, 16, 2)], K)
        if i == 0:
            for aa in range(4):
                a(f"ds_read_b128 v[{csr+4*aa}:{csr+4*aa+3}], v{tmp+1} offset:{128 + aa*32}")
        for t in range(2):
            pp = pk if t == 0 else cp
            pack8(a, c + 8 * t, pp)
            a(f"buffer_store_dwordx4 v[{pp}:{pp+3}], v{C.vl16}, s[{SR['WS']}:{SR['WS']+3}], s{st} offen offset:{(2*i+t)*1024} {store_flags}".rstrip())
    if publish: publish()
    V.release(vm); S.release(sm)

def role_g5(a, V, S, C, SR, wait_h3=None, wait_o=None):
    vm, sm = V.mark(), S.mark()
    vmq = VMQ(); st = C.st; tmp = C.tmp
    Rb = V.alloc("Rb", 8, 4); Ra = V.alloc("Ra", 8, 4); x1r = V.alloc("x1r", 4, 4); rs = V.alloc("rs", 16, 4); X = V.alloc("X", 8, 4)
    s_r0 = S.alloc("r0")
    g = mk64(a, V, C, vmq, "g5b", 1792, C.vl16, rot=True)
    a(f"s_mul_i32 s{s_r0}, s{C.s_nt}, 3")
    a(f"s_mul_i32 s{st}, s{C.s_mq}, 7")
    a(f"s_add_u32 s{s_r0}, s{s_r0}, s{st}")
    a(f"s_sub_u32 s{st}, s{s_r0}, 28")
    a(f"s_min_u32 s{s_r0}, s{s_r0}, s{st}")
    set_offsets64(a, C, WS_H3, 112, r0=s_r0)
    for s in range(5): g.issue_w(s, SR['W4'])
    if wait_h3: wait_h3(vmq)
    for s in range(2): g.issue_x(s, SR['WS'])
    a(f"s_lshl_b32 s{st}, s{C.s_mbg}, 5")
    a(f"s_add_u32 s{st}, s{st}, s{C.s_kb}")
    a(f"s_lshl_b32 s{st}, s{st}, 10")
    a(f"s_add_u32 s{st}, s{st}, {WS_X1}")
    a(f"buffer_load_dwordx4 v[{x1r}:{x1r+3}], v{C.vl16}, s[{SR['WS']}:{SR['WS']+3}], s{st} offen")
    vmq.issue('x1')
    load_rowstats(a, C, SR, C.s_mbg, rs)
    for _ in range(4): vmq.issue('rs')
    for s in range(2, 5): g.issue_x(s, SR['WS'])
    g.mainloop(SR['WS'], SR['W4'], issued=5)
    a("s_nop 7")
    a("s_barrier")
    exchange_wk(a, g, Rb, tmp, st, C.vl16, C.s_wave, C.s_wk)
    g2 = G2(a, vmq, name="g5a", TN=64, TM=64, wn=2, wm=2, wk=2, KC=64, K=512, slots=5, acc=g.acc, xf=g.xf, wf=g.wf,
            xa=g.xa, wa=g.wa, xv=C.vl16, wv=C.wv, s_xo=C.s_xo, s_wo=C.s_wo, s_m0=C.s_m0w, xstep=4096, wstep=65536,
            rot=(C.s_ri, C.s_rj, C.s_rt))
    a(f"s_lshl_b32 s{s_r0}, s{C.s_mq}, 1")
    a(f"s_add_u32 s{s_r0}, s{s_r0}, s{C.s_nt}")
    a(f"s_and_b32 s{s_r0}, s{s_r0}, 7")
    set_offsets64(a, C, WS_O, 32, r0=s_r0)
    a("s_barrier")
    for s in range(5): g2.issue_w(s, SR['WO'])
    unpack8(a, x1r, X)
    for r in range(0, 8, 2): a(f"v_pk_add_f32 {P2(Rb+r)}, {P2(Rb+r)}, {P2(X+r)}")
    a(f"v_add_f32 v{rs+2}, v{rs+2}, v{rs+6}")
    a(f"v_add_f32 v{rs+10}, v{rs+10}, v{rs+14}")
    a(f"v_add_f32 v{rs+2}, v{rs+2}, v{rs+10}")
    halves_sum(a, [rs + 2], [tmp + 2])
    gt = rs + 2; og = rs + 4
    a(f"v_mul_f32 v{gt}, {hexf(-LOG2E)}, v{gt}")
    a(f"v_exp_f32 v{gt}, v{gt}")
    a("s_nop 0")
    a(f"v_add_f32 v{gt}, 1.0, v{gt}")
    a(f"v_rcp_f32 v{gt}, v{gt}")
    a("s_nop 0")
    a(f"v_sub_f32 v{og}, 1.0, v{gt}")
    for r in range(0, 8, 2): a(f"v_pk_mul_f32 {P2(Rb+r)}, {P2(Rb+r)}, {P2(og)} op_sel_hi:[1,0]")
    a(f"s_lshl_b32 s{st+4}, s{C.s_kb}, 5")
    a(f"s_lshl_b32 s{st+5}, s{C.s_mbg}, 15")
    a(f"s_add_u32 s{st+5}, s{st+5}, s{st+4}")
    a(f"v_lshlrev_b32 v{tmp+4}, 4, v{C.vh}")
    a(f"v_lshl_add_u32 v{tmp+4}, v{C.vl32}, 10, v{tmp+4}")
    if wait_o: wait_o(vmq)
    for s in range(5): g2.issue_x(s, SR['WS'])
    g2.mainloop(SR['WS'], SR['WO'], issued=5)
    a("s_nop 7")
    a("s_barrier")
    exchange_wk(a, g2, Ra, tmp, st, C.vl16, C.s_wave, C.s_wk)
    for r in range(0, 8, 2): a(f"v_pk_fma_f32 {P2(Ra+r)}, {P2(Ra+r)}, {P2(gt)}, {P2(Rb+r)} op_sel_hi:[1,0,1]")
    pack8(a, Ra, X)
    a("s_nop 1")
    a(f"v_permlane32_swap_b32 v{X}, v{X+2}")
    a(f"v_permlane32_swap_b32 v{X+1}, v{X+3}")
    a(f"buffer_store_dwordx4 v[{X}:{X+3}], v{tmp+4}, s[{SR['OUT']}:{SR['OUT']+3}], s{st+5} offen")
    V.release(vm); S.release(sm)
```

```python
from asmlib import *
from common import *
from gemm import VMQ
from gemm3 import G3
from broles import unpack8, halves_sum, Ctx, RING
from broles2 import P2

def wpat(a, C):
    t = C.tmp; vlane = C.vlane
    a(f"v_bfe_u32 v{t}, v{vlane}, 4, 1")
    a(f"v_lshlrev_b32 v{t}, 2, v{t}")
    a(f"v_and_b32 v{t+1}, 7, v{vlane}")
    a(f"v_xor_b32 v{t}, v{t}, v{t+1}")
    a(f"v_lshrrev_b32 v{t+1}, 3, v{vlane}")
    a(f"v_lshlrev_b32 v{t+1}, 10, v{t+1}")
    a(f"v_lshl_add_u32 v{C.wv}, v{t}, 4, v{t+1}")
    a(f"v_add_u32 v{C.wv2}, 7168, v{C.wv}")

def bctx(a, V, S, vlane, s_wave, s_unit):
    C = Ctx()
    C.vlane = vlane; C.s_wave = s_wave; C.s_unit = s_unit
    C.tmp = V.alloc("btmp", 8, 2); C.st = S.alloc("bst", 6)
    for n in ("vl16", "vh", "vl32", "wv", "wv2", "lp", "vr"): setattr(C, n, V.alloc("b" + n))
    C.xa = V.alloc("xa64", 2); C.wa = V.alloc("wa64", 4)
    for n in ("ti", "tj", "mt", "nt", "mq", "mbg", "kb", "m0w", "xo", "wo", "ri", "rj", "rt", "kx", "kw"):
        setattr(C, "s_" + n, S.alloc("b" + n))
    t = C.tmp; st = C.st
    a(f"v_lshlrev_b32 v{C.vl16}, 4, v{vlane}")
    wpat(a, C)
    a(f"s_lshl_b32 s{C.s_m0w}, s{s_wave}, 11")
    a(f"s_lshr_b32 s{C.s_ti}, s{s_wave}, 1")
    a(f"s_and_b32 s{C.s_tj}, s{s_wave}, 1")
    a(f"s_and_b32 s{st}, s{s_unit}, 7")
    a(f"s_lshr_b32 s{st+1}, s{s_unit}, 3")
    a(f"s_and_b32 s{C.s_mq}, s{st+1}, 3")
    a(f"s_lshl_b32 s{C.s_mt}, s{st}, 2")
    a(f"s_add_u32 s{C.s_mt}, s{C.s_mt}, s{C.s_mq}")
    a(f"s_lshr_b32 s{C.s_nt}, s{st+1}, 2")
    a(f"s_lshl_b32 s{C.s_mbg}, s{C.s_mt}, 1")
    a(f"s_add_u32 s{C.s_mbg}, s{C.s_mbg}, s{C.s_tj}")
    a(f"s_lshl_b32 s{C.s_kb}, s{C.s_nt}, 2")
    a(f"s_lshl_b32 s{st}, s{C.s_ti}, 1")
    a(f"s_add_u32 s{C.s_kb}, s{C.s_kb}, s{st}")
    a(f"v_lshrrev_b32 v{C.vh}, 5, v{vlane}")
    a(f"v_and_b32 v{C.vl32}, 31, v{vlane}")
    return C

def bctx_reads(a, C):
    t = C.tmp; st = C.st; vlane = C.vlane
    a(f"s_lshl_b32 s{st}, s{C.s_wave}, 10")
    a(f"v_add_u32 v{C.xa}, s{st}, v{C.vl16}")
    a(f"v_add_u32 v{C.xa+1}, 0x10000, v{C.xa}")
    a(f"v_bfe_u32 v{C.vr}, v{vlane}, 2, 2")
    a(f"v_and_b32 v{t}, 3, v{vlane}")
    a(f"v_lshlrev_b32 v{t}, 3, v{t}")
    a(f"v_bfe_u32 v{t+1}, v{vlane}, 4, 1")
    a(f"v_lshl_add_u32 v{C.lp}, v{t+1}, 5, v{t}")
    a(f"v_lshl_add_u32 v{t+1}, v{C.vh}, 2, v{C.vr}")
    a(f"v_lshl_add_u32 v{t+2}, v{t+1}, 7, v{C.lp}")
    a(f"v_add_u32 v{t+2}, s{C.s_m0w}, v{t+2}")
    a(f"v_lshrrev_b32 v{t}, 1, v{C.vr}")
    a(f"v_lshl_add_u32 v{C.wa}, v{t}, 6, v{t+2}")
    a(f"v_xor_b32 v{C.wa+2}, 64, v{C.wa}")
    a(f"v_add_u32 v{C.wa+1}, 0x10000, v{C.wa}")
    a(f"v_add_u32 v{C.wa+3}, 0x10000, v{C.wa+2}")

def mk64(a, C, vmq, name, K, xv, rot, regs):
    acc, xf, wf = regs
    g = G3(a, vmq, name=name, TN=64, KC=64, K=K, ksw=1, ks_stage=4, slots=5, acc=acc, xf=xf, wf=wf,
           xa=[C.xa, C.xa + 1], wa=[[C.wa, C.wa + 1], [C.wa + 2, C.wa + 3]], xv=xv, wv=C.wv, wv2=C.wv2,
           s_xo=C.s_xo, s_wo=C.s_wo, s_m0=C.s_m0w, xstep=4096, wstep=65536, xjstride=4096,
           rot=(C.s_ri, C.s_rj, C.s_rt) if rot else None)
    g.kx = C.s_kx; g.kw = C.s_kw
    return g

def set_offsets64(a, C, xbase, kbtot, r0=None):
    st = C.st
    a(f"s_lshl_b32 s{st}, s{C.s_mt}, 1")
    a(f"s_add_u32 s{st}, s{st}, s{C.s_ti}")
    a(f"s_mul_i32 s{st}, s{st}, {kbtot}")
    a(f"s_lshl_b32 s{st+1}, s{C.s_tj}, 1")
    a(f"s_add_u32 s{st}, s{st}, s{st+1}")
    a(f"s_lshl_b32 s{st}, s{st}, 10")
    a(f"s_add_u32 s{C.s_xo}, s{st}, {xbase}")
    a(f"s_lshl_b32 s{C.s_wo}, s{C.s_wave}, 14")
    a(f"s_lshl_b32 s{st}, s{C.s_nt}, 7")
    a(f"s_add_u32 s{C.s_wo}, s{C.s_wo}, s{st}")
    if r0 is not None:
        a(f"s_mov_b32 s{C.s_ri}, s{r0}")
        a(f"s_mov_b32 s{C.s_rj}, s{r0}")
        a(f"s_lshl_b32 s{st}, s{r0}, 12")
        a(f"s_add_u32 s{C.s_xo}, s{C.s_xo}, s{st}")
        a(f"s_lshl_b32 s{st}, s{r0}, 16")
        a(f"s_add_u32 s{C.s_wo}, s{C.s_wo}, s{st}")
        a(f"s_movk_i32 s{C.s_kx}, 4096")
        a(f"s_mov_b32 s{C.s_kw}, 65536")

def reduce4(a, C, g, R, T16):
    tmp = C.tmp; st = C.st
    a(f"s_lshl_b32 s{st}, s{C.s_wave}, 12")
    a(f"v_add_u32 v{tmp}, s{st}, v{C.vl16}")
    a(f"s_lshl_b32 s{st}, s{C.s_wave}, 14")
    a(f"v_add_u32 v{tmp+1}, s{st}, v{C.vl16}")
    for q in range(4):
        for c in range(4):
            r = g.acc + q * 16 + c * 4
            a(f"ds_write_b128 v{tmp}, v[{r}:{r+3}] offset:{q * 16384 + c * 1024}")
    a("s_waitcnt lgkmcnt(0)")
    a("s_barrier")
    for src in range(4):
        for c in range(4):
            r = (R if src == 0 else T16 + (src - 1) * 16) + c * 4
            a(f"ds_read_b128 v[{r}:{r+3}], v{tmp+1} offset:{src * 4096 + c * 1024}")
        if src == 1: pass
    a("s_waitcnt lgkmcnt(8)")
    for r in range(0, 16, 2): a(f"v_pk_add_f32 {P2(R+r)}, {P2(R+r)}, {P2(T16+r)}")
    a("s_waitcnt lgkmcnt(0)")
    for r in range(0, 16, 2): a(f"v_pk_add_f32 {P2(T16+16+r)}, {P2(T16+16+r)}, {P2(T16+32+r)}")
    for r in range(0, 16, 2): a(f"v_pk_add_f32 {P2(R+r)}, {P2(R+r)}, {P2(T16+16+r)}")

def role_g3(a, V, S, C, SR, store_flags="", publish=None, mid=None):
    vm, sm = V.mark(), S.mark()
    vmq = VMQ(); st = C.st; tmp = C.tmp
    acc = V.alloc("acc", 64, 4); xf = V.alloc("xf", 16, 4); wf = V.alloc("wf", 16, 4)
    C.regs64 = (acc, xf, wf)
    xv = V.alloc("g3xv", 4); xr = xf + 8
    g = mk64(a, C, vmq, "g3", 512, [xv + i for i in range(4)], False, C.regs64)
    set_offsets64(a, C, WS_H - 32768, 32)
    g.issue(0, None, SR['W2'], 'w'); g.issue(1, None, SR['W2'], 'w')
    a(f"v_lshlrev_b32 v{tmp+2}, 9, v{C.vh}")
    for gi, s_ in enumerate([-1, 1, -2, 2]):
        a(f"v_add_u32 v{tmp}, {32 + s_}, v{C.vl32}")
        a(f"v_lshrrev_b32 v{tmp+1}, 5, v{tmp}")
        a(f"v_lshl_add_u32 v{tmp+1}, v{tmp+1}, 15, v{tmp+2}")
        a(f"v_and_b32 v{tmp}, 31, v{tmp}")
        a(f"v_lshl_add_u32 v{xv+gi}, v{tmp}, 4, v{tmp+1}")
    lnb = a.newlabel("g3_nb"); lhi = a.newlabel("g3_hi")
    a(f"s_lshl_b32 s{st}, s{C.s_mt}, 1")
    a(f"s_add_u32 s{st}, s{st}, s{C.s_ti}")
    a(f"s_cmp_eq_u32 s{st}, 63")
    a(f"s_cbranch_scc1 {lhi}")
    a(f"s_cmp_lg_u32 s{st}, 0")
    a(f"s_cbranch_scc1 {lnb}")
    a(f"v_mov_b32 v{tmp}, 0x7f000000")
    a(f"v_cmp_gt_u32 vcc, 1, v{C.vl32}")
    a("s_nop 1")
    a(f"v_cndmask_b32 v{xv}, v{xv}, v{tmp}, vcc")
    a(f"v_cmp_gt_u32 vcc, 2, v{C.vl32}")
    a("s_nop 1")
    a(f"v_cndmask_b32 v{xv+2}, v{xv+2}, v{tmp}, vcc")
    a(f"s_branch {lnb}")
    a.label(lhi)
    a(f"v_mov_b32 v{tmp}, 0x7f000000")
    a(f"v_cmp_lt_u32 vcc, 30, v{C.vl32}")
    a("s_nop 1")
    a(f"v_cndmask_b32 v{xv+1}, v{xv+1}, v{tmp}, vcc")
    a(f"v_cmp_lt_u32 vcc, 29, v{C.vl32}")
    a("s_nop 1")
    a(f"v_cndmask_b32 v{xv+3}, v{xv+3}, v{tmp}, vcc")
    a.label(lnb)
    g.issue(0, SR['WS'], None, 'x'); g.issue(1, SR['WS'], None, 'x')
    for s in range(2, 5): g.issue(s, SR['WS'], SR['W2'])
    a(f"s_lshl_b32 s{st+4}, s{C.s_kb}, 5")
    a(f"s_lshl_b32 s{st+5}, s{C.s_mbg}, 15")
    a(f"s_add_u32 s{st+5}, s{st+5}, s{st+4}")
    a(f"v_lshlrev_b32 v{tmp+6}, 3, v{C.vh}")
    a(f"v_lshl_add_u32 v{tmp+7}, v{C.vl32}, 10, v{tmp+6}")
    bctx_reads(a, C)
    g.mainloop(SR['WS'], SR['W2'], issued=5)
    gw = xf
    for aa in range(4):
        a(f"buffer_load_dwordx2 v[{xr+2*aa}:{xr+2*aa+1}], v{tmp+7}, s[{SR['X']}:{SR['X']+3}], s{st+5} offen offset:{16*aa}")
    for aa in range(4):
        a(f"buffer_load_dwordx2 v[{gw+2*aa}:{gw+2*aa+1}], v{tmp+6}, s[{SR['GW']}:{SR['GW']+3}], s{st+4} offen offset:{16*aa}")
    a("s_nop 3")
    a("s_barrier")
    R = wf
    reduce4(a, C, g, R, acc)
    if mid: mid()
    X = acc; G = acc + 16; Rr = acc + 32; pk = acc + 48; s2 = acc + 56; sv = wf
    a("s_waitcnt vmcnt(0)")
    unpack8(a, xr, X); unpack8(a, xr + 4, X + 8)
    for r in range(0, 16, 2): a(f"v_pk_add_f32 {P2(R+r)}, {P2(R+r)}, {P2(X+r)}")
    pack8(a, R, pk); pack8(a, R + 8, pk + 4)
    a(f"s_lshl_b32 s{st}, s{C.s_mbg}, 5")
    a(f"s_add_u32 s{st}, s{st}, s{C.s_kb}")
    a(f"s_lshl_b32 s{st}, s{st}, 10")
    a(f"s_add_u32 s{st}, s{st}, {WS_X1}")
    for t in range(2):
        a(f"buffer_store_dwordx4 v[{pk+4*t}:{pk+4*t+3}], v{C.vl16}, s[{SR['WS']}:{SR['WS']+3}], s{st} offen offset:{1024*t} {store_flags}".rstrip())
    unpack8(a, pk, Rr); unpack8(a, pk + 4, Rr + 8)
    unpack8(a, gw, G); unpack8(a, gw + 4, G + 8)
    a(f"v_pk_add_f32 {P2(s2)}, {P2(Rr)}, {P2(Rr+2)}")
    a(f"v_pk_mul_f32 {P2(s2+2)}, {P2(Rr)}, {P2(Rr)}")
    a(f"v_pk_mul_f32 {P2(s2+4)}, {P2(X)}, {P2(G)}")
    for r in range(2, 16, 2):
        if r >= 4: a(f"v_pk_add_f32 {P2(s2)}, {P2(s2)}, {P2(Rr+r)}")
        a(f"v_pk_fma_f32 {P2(s2+2)}, {P2(Rr+r)}, {P2(Rr+r)}, {P2(s2+2)}")
        a(f"v_pk_fma_f32 {P2(s2+4)}, {P2(X+r)}, {P2(G+r)}, {P2(s2+4)}")
    for c in range(3): a(f"v_add_f32 v{sv+c}, v{s2+2*c}, v{s2+2*c+1}")
    halves_sum(a, [sv, sv + 1, sv + 2], [tmp + 2, tmp + 3, tmp + 4])
    a(f"s_lshl_b32 s{st+1}, s{C.s_mbg}, 13")
    a(f"s_lshl_b32 s{st+2}, s{C.s_kb}, 3")
    a(f"s_add_u32 s{st+1}, s{st+1}, s{st+2}")
    a(f"s_add_u32 s{st+1}, s{st+1}, {WS_ST}")
    a(f"v_lshlrev_b32 v{tmp}, 8, v{C.vl32}")
    a("s_mov_b64 exec, 0xffffffff")
    a(f"buffer_store_dwordx4 v[{sv}:{sv+3}], v{tmp}, s[{SR['WS']}:{SR['WS']+3}], s{st+1} offen {store_flags}".rstrip())
    a("s_mov_b64 exec, -1")
    if publish: publish()
    V.release(vm); S.release(sm)

def load_rowstats(a, C, SR, s_mbg, dst32, joff=0):
    st = C.st; tmp = C.tmp
    a(f"s_lshl_b32 s{st}, s{s_mbg}, 13")
    a(f"s_add_u32 s{st}, s{st}, {WS_ST + joff * 8192}")
    a(f"v_lshlrev_b32 v{tmp}, 7, v{C.vh}")
    a(f"v_lshl_add_u32 v{tmp}, v{C.vl32}, 8, v{tmp}")
    for p in range(8):
        a(f"buffer_load_dwordx4 v[{dst32+4*p}:{dst32+4*p+3}], v{tmp}, s[{SR['WS']}:{SR['WS']+3}], s{st} offen offset:{16*p}")

def role_g4(a, V, S, C, SR, lskip_label, store_flags="", wait_in=None, publish=None, pre=None):
    vm, sm = V.mark(), S.mark()
    vmq = VMQ(); st = C.st; tmp = C.tmp
    s_mb = S.alloc("g4mb"); s_nb = S.alloc("g4nb"); s_mbg = S.alloc("g4mbg")
    C.g4_mb = s_mb; C.g4_nb = s_nb
    s_wn = C.s_ti; s_wm = C.s_tj
    a(f"s_lshr_b32 s{st+1}, s{C.s_unit}, 3")
    a(f"s_cmp_ge_u32 s{st+1}, 28")
    a(f"s_cbranch_scc1 {lskip_label}")
    a(f"s_and_b32 s{st}, s{C.s_unit}, 7")
    a(f"s_lshl_b32 s{s_mb}, s{st}, 1")
    a(f"s_and_b32 s{st+2}, s{st+1}, 1")
    a(f"s_add_u32 s{s_mb}, s{s_mb}, s{st+2}")
    a(f"s_lshr_b32 s{s_nb}, s{st+1}, 1")
    a(f"s_lshl_b32 s{st+2}, s{st+2}, 3")
    a(f"s_add_u32 s{st+2}, s{st+2}, s{s_nb}")
    a(f"s_and_b32 s{C.s_ri}, s{st+2}, 15")
    a(f"s_mov_b32 s{C.s_rj}, s{C.s_ri}")
    acc, xf, wf = C.regs64
    V.next = max(V.next, wf + 16)
    xa = C.xa; wa = C.wa; wv = C.wv; cs = 0
    assert C.wv2 == C.wv + 1
    lnp = V.alloc("lnp", 8, 2)
    g = G3(a, vmq, name="g4", TN=128, KC=32, K=512, ksw=2, ks_stage=2, slots=5, acc=acc, xf=xf, wf=wf,
           xa=[xa, xa + 1], wa=[[wa, wa + 1], [wa + 2, wa + 3]], xv=C.vl16, wv=wv, wv2=wv + 1,
           s_xo=C.s_xo, s_wo=C.s_wo, s_m0=C.s_m0w, xstep=2048, wstep=32 * 3584, xjstride=2048, rot=(C.s_ri, C.s_rj, C.s_rt))
    g.kx = C.s_kx; g.kw = C.s_kw
    a(f"s_movk_i32 s{C.s_kx}, 2048")
    a(f"s_mov_b32 s{C.s_kw}, {32 * 3584}")
    a(f"v_lshrrev_b32 v{tmp}, 4, v{C.vlane}")
    a(f"v_lshlrev_b32 v{tmp+1}, 2, v{tmp}")
    a(f"v_and_b32 v{tmp+2}, 15, v{C.vlane}")
    a(f"v_xor_b32 v{tmp+1}, v{tmp+1}, v{tmp+2}")
    a(f"v_mul_u32_u24 v{tmp}, 3584, v{tmp}")
    a(f"v_lshl_add_u32 v{wv}, v{tmp+1}, 4, v{tmp}")
    a(f"v_add_u32 v{wv+1}, {4 * 3584 - 1024}, v{wv}")
    a(f"s_mul_i32 s{C.s_wo}, s{C.s_wave}, {8 * 3584}")
    a(f"s_lshl_b32 s{st}, s{s_nb}, 8")
    a(f"s_add_u32 s{C.s_wo}, s{C.s_wo}, s{st}")
    a(f"s_mul_i32 s{st}, s{C.s_ri}, {32 * 3584}")
    a(f"s_add_u32 s{C.s_wo}, s{C.s_wo}, s{st}")
    a(f"s_lshl_b32 s{st}, s{s_mb}, 2")
    a(f"s_add_u32 s{st}, s{st}, s{C.s_wave}")
    a(f"s_lshl_b32 s{st}, s{st}, 5")
    a(f"s_lshl_b32 s{st+1}, s{C.s_ri}, 1")
    a(f"s_add_u32 s{st}, s{st}, s{st+1}")
    a(f"s_lshl_b32 s{st}, s{st}, 10")
    a(f"s_add_u32 s{C.s_xo}, s{st}, {WS_X1}")
    for s in range(5): g.issue(s, None, SR['W3'], 'w')
    a(f"s_lshl_b32 s{s_mbg}, s{s_mb}, 2")
    a(f"s_lshl_b32 s{st}, s{s_wm}, 1")
    a(f"s_add_u32 s{s_mbg}, s{s_mbg}, s{st}")
    a(f"s_lshl_b32 s{st}, s{s_nb}, 9")
    a(f"s_lshl_b32 s{st+1}, s{s_wn}, 8")
    a(f"s_add_u32 s{st}, s{st}, s{st+1}")
    a(f"s_add_u32 s{st}, s{st}, {WS_CS3}")
    a(f"v_lshlrev_b32 v{tmp}, 2, v{C.vlane}")
    cp = xf
    for p in range(8):
        a(f"buffer_load_dword v{cp+p}, v{tmp}, s[{SR['WS']}:{SR['WS']+3}], s{st} offen")
        vmq.issue('cp')
        if p < 7: a(f"s_add_u32 s{st}, s{st}, {1792*4}")
    a(f"s_lshl_b32 s{st}, s{s_wm}, 12")
    a(f"v_add_u32 v{xa}, s{st}, v{C.vl16}")
    a(f"v_add_u32 v{xa+1}, 0x10000, v{xa}")
    a(f"v_lshl_add_u32 v{tmp+1}, v{C.vh}, 2, v{C.vr}")
    a(f"v_lshl_add_u32 v{tmp+1}, v{tmp+1}, 8, v{C.lp}")
    a(f"s_lshl_b32 s{st}, s{s_wn}, 1")
    a(f"v_xor_b32 v{tmp}, s{st}, v{C.vr}")
    a(f"v_lshl_add_u32 v{wa}, v{tmp}, 6, v{tmp+1}")
    a(f"v_xor_b32 v{wa+2}, 64, v{wa}")
    a(f"v_add_u32 v{wa+1}, 0x10000, v{wa}")
    a(f"v_add_u32 v{wa+3}, 0x10000, v{wa+2}")
    if pre: pre(vmq)
    if wait_in: wait_in(vmq)
    for s in range(2): g.issue(s, SR['WS'], None, 'x')
    load_rowstats(a, C, SR, s_mbg, acc, 0)
    load_rowstats(a, C, SR, s_mbg, acc + 32, 1)
    for _ in range(16): vmq.issue('rs')
    for s in range(2, 5): g.issue(s, SR['WS'], None, 'x')
    vmq.wait(a, {'rs'})
    for p in range(0, 8, 4): a(f"v_pk_add_f32 {P2(cp+p)}, {P2(cp+p)}, {P2(cp+p+2)}")
    a(f"v_pk_add_f32 {P2(cp)}, {P2(cp)}, {P2(cp+4)}")
    a(f"v_add_f32 v{cs}, v{cp}, v{cp+1}")
    for j in range(2):
        d = acc + 32 * j
        for p in (0, 8, 16, 24): a(f"v_pk_add_f32 {P2(d+p)}, {P2(d+p)}, {P2(d+p+4)}")
        a(f"v_pk_add_f32 {P2(d)}, {P2(d)}, {P2(d+8)}")
        a(f"v_pk_add_f32 {P2(d+16)}, {P2(d+16)}, {P2(d+24)}")
        a(f"v_pk_add_f32 {P2(d)}, {P2(d)}, {P2(d+16)}")
    halves_sum(a, [acc, acc + 1, acc + 32, acc + 33], [tmp + 2, tmp + 3, tmp + 4, tmp + 5])
    for j in range(2):
        d = acc + 32 * j; L = lnp + 4 * j
        a(f"v_mul_f32 v{L+3}, {hexf(-1/512)}, v{d}")
        a(f"v_mul_f32 v{d+1}, {hexf(1/512)}, v{d+1}")
        a(f"v_fma_f32 v{d+1}, -v{L+3}, v{L+3}, v{d+1}")
        a(f"v_max_f32 v{d+1}, 0, v{d+1}")
        a(f"v_add_f32 v{d+1}, {hexf(1e-5)}, v{d+1}")
        a(f"v_rsq_f32 v{d+2}, v{d+1}")
        a(f"v_sqrt_f32 v{L+2}, v{d+1}")
        a(f"v_mul_f32 v{L}, {hexf(GK1)}, v{d+2}")
        a(f"v_mul_f32 v{d+3}, v{d+2}, v{d+2}")
        a(f"v_mul_f32 v{d+3}, v{d+3}, v{d+2}")
        a(f"v_mul_f32 v{L+1}, {hexf(GK2)}, v{d+3}")
    a("s_nop 1")
    g.mainloop(SR['WS'], SR['W3'], issued=5)
    a("s_barrier")
    a(f"s_lshl_b32 s{st}, s{C.s_wave}, 8")
    a(f"v_lshlrev_b32 v{tmp}, 2, v{C.vlane}")
    a(f"v_add_u32 v{tmp}, s{st}, v{tmp}")
    a(f"ds_write_b32 v{tmp}, v{cs}")
    a(f"v_lshlrev_b32 v{tmp+1}, 4, v{C.vh}")
    a(f"v_add_u32 v{tmp+1}, s{st}, v{tmp+1}")
    a(f"s_mul_i32 s{st}, s{s_mbg}, 112")
    a(f"s_lshl_b32 s{st+1}, s{s_nb}, 3")
    a(f"s_add_u32 s{st}, s{st}, s{st+1}")
    a(f"s_lshl_b32 s{st+1}, s{s_wn}, 2")
    a(f"s_add_u32 s{st}, s{st}, s{st+1}")
    a(f"s_lshl_b32 s{st}, s{st}, 10")
    a(f"s_add_u32 s{st}, s{st}, {WS_H3}")
    a(f"s_add_u32 s{st+1}, s{st}, {112 * 1024}")
    a("s_waitcnt lgkmcnt(0)")
    csr = wf; ts = xf
    for i in range(2):
        for aa in range(4):
            a(f"ds_read_b128 v[{csr+4*aa}:{csr+4*aa+3}], v{tmp+1} offset:{i*128 + aa*32}")
        a("s_waitcnt lgkmcnt(0)")
        for j in range(2):
            c = g.accreg(i, j); L = lnp + 4 * j
            pr = [(c + r, ts + r, csr + r) for r in range(0, 16, 2)]
            for x, t, cc in pr: a(f"v_pk_fma_f32 {P2(x)}, {P2(cc)}, {P2(L+2)}, {P2(x)} op_sel:[0,1,0] op_sel_hi:[1,1,1]")
            for x, t, cc in pr: a(f"v_pk_mul_f32 {P2(t)}, {P2(x)}, {P2(x)}")
            for x, t, cc in pr: a(f"v_pk_fma_f32 {P2(t)}, {P2(t)}, {P2(L)}, {P2(L)} op_sel:[0,1,0] op_sel_hi:[1,1,0]")
            for x, t, cc in pr: a(f"v_pk_mul_f32 {P2(t)}, {P2(t)}, {P2(x)}")
            for x, t, cc in pr: a(f"v_exp_f32 v{t}, v{t}"); a(f"v_exp_f32 v{t+1}, v{t+1}")
            for x, t, cc in pr: a(f"v_pk_fma_f32 {P2(t)}, {P2(t)}, {P2(L+2)}, {P2(L+2)} op_sel:[0,0,0] op_sel_hi:[1,0,0]")
            for x, t, cc in pr: a(f"v_rcp_f32 v{t}, v{t}"); a(f"v_rcp_f32 v{t+1}, v{t+1}")
            for x, t, cc in pr: a(f"v_pk_mul_f32 {P2(x)}, {P2(x)}, {P2(t)}")
            pack8(a, c, c); pack8(a, c + 8, c + 4)
            for t_ in range(2):
                a(f"buffer_store_dwordx4 v[{c+4*t_}:{c+4*t_+3}], v{C.vl16}, s[{SR['WS']}:{SR['WS']+3}], s{st+j} offen offset:{(2*i+t_)*1024} {store_flags}".rstrip())
    if publish: publish()
    V.release(vm); S.release(sm)

def role_g5(a, V, S, C, SR, wait_h3=None, wait_o=None, pre=None):
    vm, sm = V.mark(), S.mark()
    vmq = VMQ(); st = C.st; tmp = C.tmp
    acc, xf, wf = C.regs64
    V.next = max(V.next, wf + 16)
    Rb = V.alloc("Rb", 8, 4)
    gt = tmp + 6
    wpat(a, C)
    s_r0 = S.alloc("r0"); s_oo = S.alloc("oo")
    g = mk64(a, C, vmq, "g5b", 1792, C.vl16, True, C.regs64)
    a(f"s_mul_i32 s{s_r0}, s{C.s_nt}, 3")
    a(f"s_mul_i32 s{st}, s{C.s_mq}, 7")
    a(f"s_add_u32 s{s_r0}, s{s_r0}, s{st}")
    a(f"s_sub_u32 s{st}, s{s_r0}, 28")
    a(f"s_min_u32 s{s_r0}, s{s_r0}, s{st}")
    set_offsets64(a, C, WS_H3, 112, r0=s_r0)
    for s in range(5): g.issue(s, None, SR['W4'], 'w')
    bctx_reads(a, C)
    if pre: pre(vmq)
    if wait_h3: wait_h3(vmq)
    for s in range(2): g.issue(s, SR['WS'], None, 'x')
    a(f"s_lshl_b32 s{st}, s{C.s_mbg}, 5")
    a(f"s_add_u32 s{st}, s{st}, s{C.s_kb}")
    a(f"s_lshl_b32 s{st}, s{st}, 10")
    a(f"s_add_u32 s{st}, s{st}, {WS_X1}")
    for t in range(2):
        a(f"buffer_load_dwordx4 v[{Rb+4*t}:{Rb+4*t+3}], v{C.vl16}, s[{SR['WS']}:{SR['WS']+3}], s{st} offen offset:{1024*t}")
        vmq.issue('x1')
    load_rowstats(a, C, SR, C.s_mbg, acc, 0)
    for _ in range(8): vmq.issue('rs')
    for s in range(2, 5): g.issue(s, SR['WS'], None, 'x')
    vmq.wait(a, {'rs'})
    for p in (2, 10, 18, 26): a(f"v_add_f32 v{acc+p}, v{acc+p}, v{acc+p+4}")
    a(f"v_add_f32 v{acc+2}, v{acc+2}, v{acc+10}")
    a(f"v_add_f32 v{acc+18}, v{acc+18}, v{acc+26}")
    a(f"v_add_f32 v{gt}, v{acc+2}, v{acc+18}")
    halves_sum(a, [gt], [tmp + 2])
    a(f"v_mul_f32 v{gt}, {hexf(-LOG2E)}, v{gt}")
    a(f"v_exp_f32 v{gt}, v{gt}")
    a("s_nop 0")
    a(f"v_add_f32 v{gt}, 1.0, v{gt}")
    a(f"v_rcp_f32 v{gt}, v{gt}")
    a("s_nop 0")
    a(f"v_sub_f32 v{gt+1}, 1.0, v{gt}")
    g.mainloop(SR['WS'], SR['W4'], issued=5)
    a("s_nop 7")
    a("s_barrier")
    R = wf
    reduce4(a, C, g, R, acc)
    unpack8(a, Rb, acc); unpack8(a, Rb + 4, acc + 8)
    for r in range(0, 16, 2): a(f"v_pk_add_f32 {P2(R+r)}, {P2(R+r)}, {P2(acc+r)}")
    pack8(a, R, Rb); pack8(a, R + 8, Rb + 4)
    g2 = mk64(a, C, vmq, "g5a", 512, C.vl16, True, C.regs64)
    a(f"s_lshl_b32 s{s_r0}, s{C.s_mq}, 1")
    a(f"s_add_u32 s{s_r0}, s{s_r0}, s{C.s_nt}")
    a(f"s_and_b32 s{s_r0}, s{s_r0}, 7")
    set_offsets64(a, C, WS_O, 32, r0=s_r0)
    a("s_barrier")
    for s in range(5): g2.issue(s, None, SR['WO'], 'w')
    a(f"s_lshl_b32 s{st+4}, s{C.s_kb}, 5")
    a(f"s_lshl_b32 s{s_oo}, s{C.s_mbg}, 15")
    a(f"s_add_u32 s{s_oo}, s{s_oo}, s{st+4}")
    a(f"v_lshlrev_b32 v{tmp+4}, 4, v{C.vh}")
    a(f"v_lshl_add_u32 v{tmp+4}, v{C.vl32}, 10, v{tmp+4}")
    if wait_o: wait_o(vmq)
    for s in range(5): g2.issue(s, SR['WS'], None, 'x')
    g2.mainloop(SR['WS'], SR['WO'], issued=5)
    a("s_nop 7")
    a("s_barrier")
    reduce4(a, C, g2, R, acc)
    unpack8(a, Rb, acc); unpack8(a, Rb + 4, acc + 8)
    for r in range(0, 16, 2): a(f"v_pk_mul_f32 {P2(acc+r)}, {P2(acc+r)}, {P2(gt)} op_sel:[0,1] op_sel_hi:[1,1]")
    for r in range(0, 16, 2): a(f"v_pk_fma_f32 {P2(R+r)}, {P2(R+r)}, {P2(gt)}, {P2(acc+r)} op_sel_hi:[1,0,1]")
    pack8(a, R, acc + 16); pack8(a, R + 8, acc + 20)
    a("s_nop 1")
    for t in range(2):
        X = acc + 16 + 4 * t
        a(f"v_permlane32_swap_b32 v{X}, v{X+2}")
        a(f"v_permlane32_swap_b32 v{X+1}, v{X+3}")
        a(f"buffer_store_dwordx4 v[{X}:{X+3}], v{tmp+4}, s[{SR['OUT']}:{SR['OUT']+3}], s{s_oo} offen offset:{32*t}")
    V.release(vm); S.release(sm)
```

```python
from asmlib import *
from gemm import VMQ

DBG = dict(nomfma=False, noread=False, nodma=False)
class G2:
    def __init__(self, a, vmq, *, name, TN, TM, wn, wm, wk, KC, K, slots, acc, xf, wf, xa, wa, xv, wv,
                 s_xo, s_wo, s_m0, xstep, wstep, PD=2, xvar=None, rot=None):
        self.__dict__.update(locals())
        self.af = TN // 32 // wn; self.bf = TM // 32 // wm
        self.nst = K // KC; self.ks_stage = KC // 16; self.ksw = self.ks_stage // wk
        self.nbuf = PD + 1
        self.xbytes = TM * KC * 2; self.wbytes = KC * TN * 2; self.stage_bytes = self.xbytes + self.wbytes
        assert self.xbytes == 8192 and self.wbytes == 8192
        self.RB = TN * 2
        self.first = True
    def accreg(self, i, j): return self.acc + (i * self.bf + j) * 16
    def issue_x(self, stage, srd):
        a = self.a; slot = stage % self.slots
        xv = self.xv[(stage * self.KC) // 128] if isinstance(self.xv, list) else self.xv
        a(f"s_add_u32 m0, s{self.s_m0}, {slot * self.stage_bytes}")
        a(f"s_nop 0")
        a(f"buffer_load_dwordx4 v{xv}, s[{srd}:{srd+3}], s{self.s_xo} offen lds")
        self.vmq.issue((self.name, 'x', stage))
        if self.rot and stage + 1 < self.nst:
            idx, _, _ = self.rot
            a(f"s_add_u32 s{self.s_xo}, s{self.s_xo}, {self.xstep}")
            a(f"s_add_u32 s{idx}, s{idx}, 1")
            a(f"s_cmp_eq_u32 s{idx}, {self.nst}")
            a(f"s_cselect_b32 s{self.rot[2]}, {self.nst * self.xstep}, 0")
            a(f"s_sub_u32 s{self.s_xo}, s{self.s_xo}, s{self.rot[2]}")
        else:
            a(f"s_add_u32 s{self.s_xo}, s{self.s_xo}, {self.xstep}")
    def issue_w(self, stage, srd):
        a = self.a; slot = stage % self.slots
        a(f"s_add_u32 m0, s{self.s_m0}, {slot * self.stage_bytes + self.xbytes}")
        a(f"s_nop 0")
        a(f"buffer_load_dwordx4 v{self.wv}, s[{srd}:{srd+3}], s{self.s_wo} offen lds")
        self.vmq.issue((self.name, 'w', stage))
        if self.rot and stage + 1 < self.nst:
            _, idx, _ = self.rot
            a(f"s_add_u32 s{self.s_wo}, s{self.s_wo}, {self.wstep}")
            a(f"s_add_u32 s{idx}, s{idx}, 1")
            a(f"s_cmp_eq_u32 s{idx}, {self.nst}")
            a(f"s_cselect_b32 s{self.rot[2]}, {self.nst * self.wstep}, 0")
            a(f"s_sub_u32 s{self.s_wo}, s{self.s_wo}, s{self.rot[2]}")
        else:
            a(f"s_add_u32 s{self.s_wo}, s{self.s_wo}, {self.wstep}")
    def wait_stage(self, stage):
        self.vmq.wait(self.a, {(self.name, 'x', stage), (self.name, 'w', stage)})
    def read_frags(self, n):
        a = self.a
        if DBG['noread']: return
        stage, ks = divmod(n, self.ksw); buf = n % self.nbuf
        sb = (stage % self.slots) * self.stage_bytes
        for j in range(self.bf):
            off = sb + (j * self.ks_stage + ks) * 1024
            d = self.xf + (buf * self.bf + j) * 4
            a(f"ds_read_b128 v[{d}:{d+3}], v{self.xa[off // 65536]} offset:{off % 65536}")
        for i in range(self.af):
            for jj in range(2):
                off = sb + self.xbytes + (16 * ks + 8 * jj) * self.RB
                d = self.wf + (buf * self.af + i) * 4 + 2 * jj
                a(f"ds_read_b64_tr_b16 v[{d}:{d+1}], v{self.wa[i][off // 65536]} offset:{off % 65536}")
    def mfmas(self, buf):
        a = self.a
        if DBG['nomfma']: return
        for i in range(self.af):
            for j in range(self.bf):
                c = self.accreg(i, j); w = self.wf + (buf * self.af + i) * 4; x = self.xf + (buf * self.bf + j) * 4
                cs = "0" if self.first else f"v[{c}:{c+15}]"
                a(f"v_mfma_f32_32x32x16_bf16 v[{c}:{c+15}], v[{w}:{w+3}], v[{x}:{x+3}], {cs}")
        self.first = False
    def step_code(self, n, xsrd, wsrd):
        a = self.a
        nrd = self.bf + 2 * self.af
        total = self.nst * self.ksw
        m = n + self.PD
        dmas = []
        if m < total:
            if m % self.ksw == 0:
                sp = m // self.ksw
                self.wait_stage(sp)
                a("s_barrier")
                lim = min(self.nst - 1, max(sp - 2, -1) + self.slots)
                while self.next_dma <= lim and len(dmas) < self.max_issue:
                    dmas.append(self.next_dma); self.next_dma += 1
            self.read_frags(m)
        ahead = min(self.PD, total - 1 - n)
        a(f"s_waitcnt lgkmcnt({ahead * nrd})")
        self.mfmas(n % self.nbuf)
        for d in dmas:
            self.issue_x(d, xsrd); self.issue_w(d, wsrd)
        if self.hook: self.hook(n)
    def mainloop(self, xsrd, wsrd, issued, max_issue=1, loop=None, s_cnt=None, hook=None):
        a = self.a
        self.next_dma = issued; self.max_issue = max_issue; self.hook = hook
        self.wait_stage(0)
        a("s_barrier")
        for n in range(self.PD): self.read_frags(n)
        total = self.nst * self.ksw
        n = 0
        while n < total:
            if loop and n == loop[0] * self.ksw:
                first, count, period = loop
                assert period % self.slots == 0 and (period * self.ksw) % self.nbuf == 0 and not self.first
                norm = lambda q, base: [(t[0], t[1], t[2] - base) if isinstance(t, tuple) and t[0] == self.name else t for t in q]
                q0 = norm(self.vmq.q, first); nd0 = self.next_dma
                lab = a.newlabel(self.name + "_loop")
                a(f"s_mov_b32 s{s_cnt}, {count}")
                a.label(lab)
                for t in range(period * self.ksw): self.step_code(n + t, xsrd, wsrd)
                assert q0 == norm(self.vmq.q, first + period)
                a(f"s_sub_u32 s{s_cnt}, s{s_cnt}, 1")
                a(f"s_cmp_lg_u32 s{s_cnt}, 0")
                a(f"s_cbranch_scc1 {lab}")
                adv = (count - 1) * period
                assert self.next_dma == nd0 + period
                self.next_dma += adv
                assert self.next_dma < self.nst
                self.vmq.q = [(t[0], t[1], t[2] + adv) if isinstance(t, tuple) and t[0] == self.name else t for t in self.vmq.q]
                n += count * period * self.ksw
            else:
                self.step_code(n, xsrd, wsrd); n += 1
```

```python
from asmlib import *
from gemm import VMQ

DBG = dict(nomfma=False, noread=False, space=None)
class G3:
    def __init__(self, a, vmq, *, name, TN, KC, K, ksw, ks_stage, slots, acc, xf, wf, xa, wa, xv, wv, wv2,
                 s_xo, s_wo, s_m0, xstep, wstep, xjstride, rot=None, PD=1, nf=2):
        self.__dict__.update(locals())
        self.nst = K // KC; self.nbuf = PD + 1
        self.SB = 16384; self.RB = TN * 2
        self.first = True
        self.hook = None
        self.inter = DBG.get('inter', False)
    def accreg(self, i, j): return self.acc + (i * self.nf + j) * 16
    def _adv(self, which):
        a = self.a
        if not self.rot:
            for w in which:
                so, stp = (self.s_xo, self.xstep) if w == 'x' else (self.s_wo, self.wstep)
                a(f"s_add_u32 s{so}, s{so}, {stp}")
            return
        ix, iw, t = self.rot
        idx = ix if which[0] == 'x' else iw
        a(f"s_add_u32 s{idx}, s{idx}, 1")
        a(f"s_cmp_eq_u32 s{idx}, {self.nst}")
        for w in which:
            so, stp = (self.s_xo, self.xstep) if w == 'x' else (self.s_wo, self.wstep)
            a(f"s_cselect_b32 s{t}, {(stp - self.nst * stp) & 0xffffffff:#x}, s{self.kx if w == 'x' else self.kw}")
            a(f"s_add_u32 s{so}, s{so}, s{t}")
    def issue(self, stage, xsrd, wsrd, which="xw"):
        a = self.a; slot = stage % self.slots
        if 'x' in which:
            xv = self.xv[(stage * self.KC) // 128] if isinstance(self.xv, list) else self.xv
            a(f"s_add_u32 m0, s{self.s_m0}, {slot * self.SB}")
            a("s_nop 0")
            a(f"buffer_load_dwordx4 v{xv}, s[{xsrd}:{xsrd+3}], s{self.s_xo} offen lds")
            a(f"buffer_load_dwordx4 v{xv}, s[{xsrd}:{xsrd+3}], s{self.s_xo} offen offset:1024 lds")
            self.vmq.issue((self.name, 'x', stage)); self.vmq.issue((self.name, 'x', stage))
        if 'w' in which:
            a(f"s_add_u32 m0, s{self.s_m0}, {slot * self.SB + 8192}")
            a("s_nop 0")
            a(f"buffer_load_dwordx4 v{self.wv}, s[{wsrd}:{wsrd+3}], s{self.s_wo} offen lds")
            a(f"buffer_load_dwordx4 v{self.wv2}, s[{wsrd}:{wsrd+3}], s{self.s_wo} offen offset:1024 lds")
            self.vmq.issue((self.name, 'w', stage)); self.vmq.issue((self.name, 'w', stage))
        if stage + 1 < self.nst: self._adv(which)
    def wait_stage(self, stage):
        self.vmq.wait(self.a, {(self.name, 'x', stage), (self.name, 'w', stage)})
    def read_frags(self, n):
        a = self.a
        if DBG['noread']: return
        stage, ks = divmod(n, self.ksw); buf = n % self.nbuf
        sb = (stage % self.slots) * self.SB
        for j in range(self.nf):
            off = sb + j * self.xjstride + ks * 1024
            d = self.xf + (buf * self.nf + j) * 4
            a(f"ds_read_b128 v[{d}:{d+3}], v{self.xa[off // 65536]} offset:{off % 65536}")
        for i in range(self.nf):
            for jj in range(2):
                off = sb + 8192 + (16 * ks + 8 * jj) * self.RB
                d = self.wf + (buf * self.nf + i) * 4 + 2 * jj
                a(f"ds_read_b64_tr_b16 v[{d}:{d+1}], v{self.wa[i][off // 65536]} offset:{off % 65536}")
    def mfmas(self, buf):
        a = self.a
        if DBG['nomfma']: return
        lp = DBG.get('lowprio')
        if lp is not None and (self.nf == 2 or DBG.get('lowall')): a(f"s_setprio {lp[0]}")
        for i in range(self.nf):
            for j in range(self.nf):
                c = self.accreg(i, j); w = self.wf + (buf * self.nf + i) * 4; x = self.xf + (buf * self.nf + j) * 4
                cs = "0" if self.first else f"v[{c}:{c+15}]"
                a(f"v_mfma_f32_32x32x16_bf16 v[{c}:{c+15}], v[{w}:{w+3}], v[{x}:{x+3}], {cs}")
                if DBG['space']: a(DBG['space'])
        if lp is not None and (self.nf == 2 or DBG.get('lowall')): a(f"s_setprio {lp[1]}")
        self.first = False
    def mainloop(self, xsrd, wsrd, issued, hook=None):
        a = self.a
        nd = issued
        self.wait_stage(0)
        a("s_barrier")
        for n in range(self.PD): self.read_frags(n)
        total = self.nst * self.ksw
        for n in range(total):
            m = n + self.PD
            dma = None
            if m < total:
                if m % self.ksw == 0:
                    sp = m // self.ksw
                    self.wait_stage(sp)
                    a("s_barrier")
                    if nd <= min(self.nst - 1, max(sp - 2, -1) + self.slots):
                        dma = nd; nd += 1
                self.read_frags(m)
            a(f"s_waitcnt lgkmcnt({min(self.PD, total - 1 - n) * 6})")
            if dma is not None and self.inter:
                from asmlib import Asm
                sub = Asm(); sub.filt = a.filt
                self.a = sub; self.issue(dma, xsrd, wsrd); dl = sub.lines
                sub2 = Asm(); self.a = sub2; self.mfmas(n % self.nbuf); ml = sub2.lines
                self.a = a
                groups = [[]]
                for l in dl:
                    groups[-1].append(l)
                    if 'buffer_load' in l: groups.append([])
                for i_, l in enumerate(ml):
                    a.lines.append(l)
                    if i_ < len(groups): a.lines += groups[i_]
                for gr in groups[len(ml):]: a.lines += gr
            else:
                self.mfmas(n % self.nbuf)
                if dma is not None: self.issue(dma, xsrd, wsrd)
            if hook: hook(n)
```

```python
from asmlib import *
from common import *
from gemm import *

def gen_k1(a, name="k1_kernel", stamps=False, npre=3, hookmode="pk", prefetch=False, touch=False):
    kernel_header(a, name)
    V = Regs(1, 164, 'v'); S = Regs(28, 56, 's')
    end = a.newlabel("k1_end")
    a("s_cmp_ge_u32 s2, 256")
    a(f"s_cbranch_scc1 {end}")
    a("s_load_dwordx4 s[4:7], s[0:1], 0")
    a("s_load_dwordx2 s[92:93], s[0:1], 32")
    a("s_load_dwordx2 s[94:95], s[0:1], 48")
    a("s_load_dwordx2 s[98:99], s[0:1], 88")
    T = Stamps(a, 60, 16, stamps)
    T.stamp()
    vlane = V.alloc("lane"); tmp = V.alloc("tmp", 8)
    s_wave = S.alloc("wave"); s_wn = S.alloc("wn"); s_wm = S.alloc("wm"); s_wk = S.alloc("wk")
    s_mblk = S.alloc("mblk"); s_j = S.alloc("j"); s_rot = S.alloc("rot")
    st = S.alloc("st", 6)
    s_ones = S.alloc("ones"); s_f0 = S.alloc("f0")
    a(f"v_and_b32 v{vlane}, 63, v0")
    a(f"v_lshrrev_b32 v{tmp}, 6, v0")
    a("s_nop 0")
    a(f"v_readfirstlane_b32 s{s_wave}, v{tmp}")
    a(f"s_and_b32 s{st}, s2, 7")
    a(f"s_lshr_b32 s{st+1}, s2, 3")
    a(f"s_lshr_b32 s{s_mblk}, s{st}, 1")
    a(f"s_lshl_b32 s{s_mblk}, s{s_mblk}, 2")
    a(f"s_and_b32 s{st+2}, s{st+1}, 3")
    a(f"s_add_u32 s{s_mblk}, s{s_mblk}, s{st+2}")
    a(f"s_and_b32 s{s_j}, s{st}, 1")
    a(f"s_lshl_b32 s{s_j}, s{s_j}, 3")
    a(f"s_lshr_b32 s{st+3}, s{st+1}, 2")
    a(f"s_add_u32 s{s_j}, s{s_j}, s{st+3}")
    a(f"s_lshl_b32 s{s_rot}, s{st+2}, 1")
    a(f"s_add_u32 s{s_rot}, s{s_rot}, s{st+3}")
    a(f"s_and_b32 s{s_rot}, s{s_rot}, 7")
    XS, WSP, W3 = 8, 16, 24
    SLOTS, STB = 5, 32768
    l_cons = a.newlabel("k1_cons"); l_pw = a.newlabel("k1_pw"); l_pside = a.newlabel("k1_pside")
    a(f"s_cmp_lt_u32 s{s_wave}, 8")
    a(f"s_cbranch_scc1 {l_cons}")
    a("s_setprio 3")
    pv = V.mark()
    p_x = V.alloc("px", 2); p_b = V.alloc("pb", 2, 2); p_st = V.alloc("pst"); p_ad = V.alloc("pad", 8, 2)
    c3 = V.alloc("c3", 32, 4); acc8 = V.alloc("acc8", 8, 4); sw8 = V.alloc("sw8", 8); vc3 = V.alloc("vc3")
    V.release(pv)
    s_k = st + 4; s_o = st + 5
    s_ph = S.alloc("ph"); s_mb = S.alloc("pm0")
    a(f"s_and_b32 s{s_ph}, s{s_wave}, 1")
    a(f"s_lshl_b32 s{s_mb}, s{s_ph}, 13")
    a(f"s_cmp_ge_u32 s{s_wave}, 10")
    a(f"s_cbranch_scc1 {l_pw}")
    for par in range(2):
        a(f"v_lshrrev_b32 v{tmp}, 4, v{vlane}")
        if par: a(f"v_add_u32 v{tmp}, 4, v{tmp}")
        a(f"v_and_b32 v{tmp+1}, 7, v{vlane}")
        a(f"v_xor_b32 v{tmp}, v{tmp}, v{tmp+1}")
        a(f"v_lshrrev_b32 v{tmp+1}, 3, v{vlane}")
        a(f"v_lshlrev_b32 v{tmp+1}, 10, v{tmp+1}")
        a(f"v_lshl_add_u32 v{p_x+par}, v{tmp}, 4, v{tmp+1}")
    a(f"s_lshl_b32 s{st}, s{s_mblk}, 17")
    a(f"s_lshl_b32 s{st+1}, s{s_ph}, 16")
    a(f"s_add_u32 s{st}, s{st}, s{st+1}")
    a(f"s_mov_b32 s{s_k}, s{s_rot}")
    a("s_waitcnt lgkmcnt(0)")
    srd(a, XS, 4, 2048 * 1024)
    vq = VMQ()
    def px_issue(stage):
        slot = stage % SLOTS
        a(f"s_lshl_b32 s{s_o}, s{s_k}, 7")
        a(f"s_add_u32 s{s_o}, s{s_o}, s{st}")
        for q in range(8):
            a(f"s_add_u32 m0, s{s_mb}, {slot * STB + q * 1024}")
            if q: a(f"s_add_u32 s{s_o}, s{s_o}, 8192")
            else: a("s_nop 0")
            a(f"buffer_load_dwordx4 v{p_x + (q & 1)}, s[{XS}:{XS+3}], s{s_o} offen lds")
            vq.issue(stage)
        a(f"s_add_u32 s{s_k}, s{s_k}, 1")
        a(f"s_and_b32 s{s_k}, s{s_k}, 7")
    def producer_loop(issue, side_issue):
        nd = 0
        for s_ in range(npre):
            issue(s_); nd += 1
        for sp in range(8):
            vq.wait(a, {sp})
            a("s_barrier")
            lim = min(7, max(sp - 2, -1) + SLOTS)
            k = 0
            while nd <= lim and k < 2:
                issue(nd); nd += 1; k += 1
                if nd == 8: side_issue()
        a("s_barrier")
    def side_issue():
        srd(a, W3, 94, 512 * 3584)
        a(f"s_mul_hi_u32 s{st+1}, s2, {(1 << 32) // 28 + 1}")
        a(f"s_mul_i32 s{st+2}, s{st+1}, 28")
        a(f"s_sub_u32 s{st+2}, s2, s{st+2}")
        a(f"s_lshl_b32 s{st+3}, s{st+1}, 2")
        a(f"s_add_u32 s{st+3}, s{st+3}, s{s_wave}")
        a(f"s_sub_u32 s{st+3}, s{st+3}, 8")
        a(f"s_mul_i32 s{s_o}, s{st+3}, {64 * 3584}")
        a(f"s_lshl_b32 s{s_k}, s{st+2}, 7")
        a(f"s_add_u32 s{s_o}, s{s_o}, s{s_k}")
        a(f"s_cmp_lt_u32 s2, 56")
        a(f"s_cselect_b32 s{s_o}, s{s_o}, 0x7f000000")
        a(f"v_lshrrev_b32 v{vc3}, 3, v{vlane}")
        a(f"v_mul_u32_u24 v{vc3}, 3584, v{vc3}")
        a(f"v_and_b32 v{tmp}, 7, v{vlane}")
        a(f"v_lshl_add_u32 v{vc3}, v{tmp}, 4, v{vc3}")
        for i in range(8):
            a(f"buffer_load_dwordx4 v[{c3+4*i}:{c3+4*i+3}], v{vc3}, s[{W3}:{W3+3}], s{s_o} offen")
            vq.issue('c3')
            if i < 7: a(f"s_add_u32 s{s_o}, s{s_o}, {8*3584}")
    producer_loop(px_issue, side_issue)
    a(f"s_branch {l_pside}")
    a.label(l_pw)
    a(f"v_lshrrev_b32 v{tmp}, 4, v{vlane}")
    a(f"v_lshlrev_b32 v{tmp+1}, 2, v{tmp}")
    a(f"v_and_b32 v{tmp+2}, 15, v{vlane}")
    a(f"v_xor_b32 v{tmp+1}, v{tmp+1}, v{tmp+2}")
    a(f"v_cmp_gt_u32 vcc, 12, v{tmp+1}")
    a(f"v_mov_b32 v{tmp+2}, 1024")
    a(f"v_mov_b32 v{tmp+3}, 3072")
    a(f"v_cndmask_b32 v{p_st}, v{tmp+2}, v{tmp+3}, vcc")
    a(f"v_mul_u32_u24 v{tmp}, v{tmp}, v{p_st}")
    a(f"v_lshl_add_u32 v{tmp}, v{tmp+1}, 4, v{tmp}")
    a(f"s_mul_i32 s{st}, s{s_j}, 192")
    a(f"s_lshl_b32 s{st+1}, s{s_j}, 6")
    a(f"s_sub_u32 s{st+1}, s{st+1}, 192")
    a(f"v_mov_b32 v{tmp+2}, s{st+1}")
    a(f"v_mov_b32 v{tmp+3}, s{st}")
    a(f"v_cndmask_b32 v{tmp+2}, v{tmp+2}, v{tmp+3}, vcc")
    a(f"v_add_u32 v{tmp}, v{tmp}, v{tmp+2}")
    a(f"s_mov_b32 s{s_k}, s{s_rot}")
    a("s_waitcnt lgkmcnt(0)")
    a(f"v_mov_b32 v{tmp+2}, s92")
    a(f"v_mov_b32 v{tmp+3}, s6")
    a(f"v_cndmask_b32 v{p_b}, v{tmp+2}, v{tmp+3}, vcc")
    a(f"v_mov_b32 v{tmp+2}, s93")
    a(f"v_mov_b32 v{tmp+3}, s7")
    a(f"v_cndmask_b32 v{p_b+1}, v{tmp+2}, v{tmp+3}, vcc")
    a(f"v_add_co_u32 v{p_b}, vcc, v{p_b}, v{tmp}")
    a("s_nop 1")
    a(f"v_addc_co_u32 v{p_b+1}, vcc, 0, v{p_b+1}, vcc")
    vq.q = []
    def pw_issue(stage):
        slot = stage % SLOTS
        a(f"s_lshl_b32 s{s_o}, s{s_k}, 6")
        a(f"s_lshl_b32 s{st}, s{s_ph}, 5")
        a(f"s_add_u32 s{s_o}, s{s_o}, s{st}")
        for q in range(8):
            ad = p_ad + 2 * (q % 4)
            a(f"v_mad_u64_u32 v[{ad}:{ad+1}], vcc, v{p_st}, s{s_o}, v[{p_b}:{p_b+1}]")
            a(f"s_add_u32 m0, s{s_mb}, {slot * STB + 16384 + q * 1024}")
            a(f"s_add_u32 s{s_o}, s{s_o}, 4")
            a(f"global_load_lds_dwordx4 v[{ad}:{ad+1}], off")
            vq.issue(stage)
        a(f"s_add_u32 s{s_k}, s{s_k}, 1")
        a(f"s_and_b32 s{s_k}, s{s_k}, 7")
    producer_loop(pw_issue, side_issue)
    a.label(l_pside)
    srd(a, WSP, 98, WS_SIZE)
    lnz = a.newlabel("k1_noz")
    a(f"s_cmp_lg_u32 s2, 100")
    a(f"s_cbranch_scc1 {lnz}")
    for e in range(4):
        a(f"v_mov_b32 v{acc8+e}, 0")
    a(f"s_sub_u32 s{st}, s{s_wave}, 8")
    a(f"s_lshl_b32 s{st}, s{st}, 12")
    a(f"s_add_u32 s{st}, s{st}, {WS_FLAG}")
    a(f"v_lshlrev_b32 v{tmp}, 4, v{vlane}")
    for e in range(4):
        a(f"buffer_store_dwordx4 v[{acc8}:{acc8+3}], v{tmp}, s[{WSP}:{WSP+3}], s{st} offen offset:{1024*e}")
    a.label(lnz)
    a(f"s_cmp_ge_u32 s2, 56")
    a(f"s_cbranch_scc1 {end}")
    a(f"s_mov_b32 s{st}, 0x00003f80")
    a(f"s_mov_b32 s{st+1}, 0x3f800000")
    for e in range(8):
        a(f"v_mov_b32 v{acc8+e}, 0")
    a("s_waitcnt vmcnt(0)")
    for i in range(8):
        for d in range(4):
            a(f"v_dot2_f32_bf16 v{acc8+2*d}, v{c3+4*i+d}, s{st}, v{acc8+2*d}")
            a(f"v_dot2_f32_bf16 v{acc8+2*d+1}, v{c3+4*i+d}, s{st+1}, v{acc8+2*d+1}")
    a("s_nop 3")
    for e in range(8):
        a(f"v_add_f32_dpp v{acc8+e}, v{acc8+e}, v{acc8+e} row_ror:8 row_mask:0xf bank_mask:0xf")
    for sw in ("v_permlane16_swap_b32", "v_permlane32_swap_b32"):
        for e in range(8):
            a(f"v_mov_b32 v{sw8+e}, v{acc8+e}")
        a("s_nop 1")
        for e in range(8):
            a(f"{sw} v{sw8+e}, v{acc8+e}")
        for e in range(8):
            a(f"v_add_f32 v{acc8+e}, v{acc8+e}, v{sw8+e}")
    a(f"s_mul_i32 s{st}, s{st+3}, {1792*4}")
    a(f"s_lshl_b32 s{st+1}, s{st+2}, 8")
    a(f"s_add_u32 s{st}, s{st}, s{st+1}")
    a(f"s_add_u32 s{st}, s{st}, {WS_CS3}")
    a(f"v_lshlrev_b32 v{tmp}, 5, v{vlane}")
    a("s_mov_b64 exec, 0xff")
    a(f"buffer_store_dwordx4 v[{acc8}:{acc8+3}], v{tmp}, s[{WSP}:{WSP+3}], s{st} offen")
    a(f"buffer_store_dwordx4 v[{acc8+4}:{acc8+7}], v{tmp}, s[{WSP}:{WSP+3}], s{st} offen offset:16")
    a(f"s_branch {end}")

    a.label(l_cons)
    vmq = VMQ()
    if prefetch:
        code_prefetch(a, vlane, 164, tmp, 56, s_wave)
    if touch:
        lt = a.newlabel("k1_touch")
        a(f"s_cmp_gt_u32 s{s_wave}, 5")
        a(f"s_cbranch_scc1 {lt}")
        a(f"s_lshl_b32 s56, s{s_wave}, 3")
        tbl = [88, 16, 40, 48, 56, 72]
        a(f"s_mov_b32 s57, {tbl[0]}")
        for w, off in enumerate(tbl[1:], 1):
            a(f"s_cmp_eq_u32 s{s_wave}, {w}")
            a(f"s_cselect_b32 s57, {off}, s57")
        a(f"s_load_dwordx2 s[58:59], s[0:1], s57")
        a(f"s_cmp_eq_u32 s{s_wave}, 0")
        a(f"s_cselect_b32 s56, 19, 15")
        a(f"s_mov_b32 s57, {512*1024}")
        a(f"s_cmp_ge_u32 s{s_wave}, 3")
        a(f"s_cselect_b32 s57, {1792*1024}, s57")
        a(f"s_cmp_eq_u32 s{s_wave}, 0")
        a(f"s_cselect_b32 s57, {WS_SIZE}, s57")
        a(f"v_lshlrev_b32 v{tmp}, s56, v{vlane}")
        a("s_waitcnt lgkmcnt(0)")
        a(f"s_mov_b32 s20, s58")
        a(f"s_and_b32 s21, s59, 0xffff")
        a(f"s_mov_b32 s22, s57")
        a(f"s_mov_b32 s23, 0x00020000")
        a(f"buffer_load_dword v164, v{tmp}, s[20:23], 0 offen")
        a.label(lt)
    a(f"s_lshr_b32 s{s_wn}, s{s_wave}, 2")
    a(f"s_and_b32 s{s_wm}, s{s_wave}, 3")
    a(f"s_mov_b32 s{s_wk}, 0")
    a(f"s_mov_b32 s{s_ones}, 0x3f803f80")
    a(f"s_mul_i32 s{s_f0}, s{s_j}, 3")
    a(f"s_lshl_b32 s{st}, s{s_wn}, 1")
    a(f"s_add_u32 s{s_f0}, s{s_f0}, s{st}")
    g = Gemm(a, V, S, vmq, name="g1", nw=8, TN=128, TM=128, wn=2, wm=4, wk=1, KC=64, K=512, slots=SLOTS,
             xmode='raw', korder='nat', consumer_only=True)
    g.alloc()
    g._setup2 = (vlane, tmp, st, s_wn, s_wm, s_wk)
    g.setup_reads()
    stat = V.alloc("stat", 2, 2); cs = stat
    vh = V.alloc("h"); vl32 = V.alloc("l32")
    pk = V.alloc("pk", 8, 4); vo = V.alloc("vo"); vov = V.alloc("vov")
    csr = V.alloc("csr", 16, 4); cst = V.alloc("cst", 16, 4)
    mean = V.alloc("mean"); rstd = V.alloc("rstd"); vk1 = V.alloc("vk1")
    s_mbg = S.alloc("mbg"); s_k2 = S.alloc("k2")
    a(f"v_lshrrev_b32 v{vh}, 5, v{vlane}")
    a(f"v_and_b32 v{vl32}, 31, v{vlane}")
    g.zero_acc()
    a(f"v_mov_b32 v{stat}, 0")
    a(f"v_mov_b32 v{stat+1}, 0")
    a(f"v_lshlrev_b32 v{vo}, 4, v{vlane}")
    a(f"v_lshrrev_b32 v{tmp}, 4, v{vl32}")
    a(f"v_lshlrev_b32 v{vov}, 16, v{tmp}")
    a(f"v_and_b32 v{tmp}, 15, v{vl32}")
    a(f"v_lshl_add_u32 v{vov}, v{tmp}, 4, v{vov}")
    a(f"v_lshl_add_u32 v{vov}, v{vh}, 8, v{vov}")
    a(f"v_mov_b32 v{vk1}, {hexf(GK1)}")
    a(f"s_mov_b32 s{s_k2}, {hexf(GK2)}")
    a(f"s_lshl_b32 s{s_mbg}, s{s_mblk}, 2")
    a(f"s_add_u32 s{s_mbg}, s{s_mbg}, s{s_wm}")
    a("s_waitcnt lgkmcnt(0)")
    srd(a, WSP, 98, WS_SIZE)
    T.stamp()
    up = V.alloc("up", 8, 2); sacc = V.alloc("sacc", 4, 2)
    for r in range(4):
        a(f"v_mov_b32 v{sacc+r}, 0")
    def unpack(src):
        for r in range(4):
            a(f"v_lshlrev_b32 v{up+2*r}, 16, v{src+r}")
            a(f"v_and_b32 v{up+2*r+1}, 0xffff0000, v{src+r}")
    def hook0(s, ks, buf):
        if hookmode == "none": return
        x = g.xf + buf * 4
        unpack(x)
        for r in range(4):
            if hookmode == "pk":
                a(f"v_pk_add_f32 v[{sacc}:{sacc+1}], v[{sacc}:{sacc+1}], v[{up+2*r}:{up+2*r+1}]")
                a(f"v_pk_fma_f32 v[{sacc+2}:{sacc+3}], v[{up+2*r}:{up+2*r+1}], v[{up+2*r}:{up+2*r+1}], v[{sacc+2}:{sacc+3}]")
            else:
                for u in range(2):
                    a(f"v_add_f32 v{sacc+u}, v{sacc+u}, v{up+2*r+u}")
                    a(f"v_fmac_f32 v{sacc+2+u}, v{up+2*r+u}, v{up+2*r+u}")
    def hook1(s, ks, buf):
        if hookmode == "none": return
        w = g.wf + (buf * 2 + 1) * 4
        unpack(w)
        for r in range(4):
            if hookmode == "pk":
                q = sacc + 2 * (r & 1)
                a(f"v_pk_add_f32 v[{q}:{q+1}], v[{q}:{q+1}], v[{up+2*r}:{up+2*r+1}]")
            else:
                for u in range(2):
                    q = sacc + 2 * (r & 1) + u
                    a(f"v_add_f32 v{q}, v{q}, v{up+2*r+u}")
    L = {k: a.newlabel("k1_" + k) for k in ("0n", "0s", "1n", "1s", "e0", "e1", "w1")}
    a(f"s_cmp_eq_u32 s{s_wn}, 1")
    a(f"s_cbranch_scc1 {L['w1']}")
    a(f"s_cmp_lt_u32 s{s_f0}, 32")
    a(f"s_cbranch_scc1 {L['0n']}")
    Ti = T.i
    def qkv_epi(i):
        lv = a.newlabel("k1_ev"); ld = a.newlabel("k1_ed")
        a(f"s_add_u32 s{st+4}, s{s_f0}, {i}")
        a(f"s_and_b32 s{st}, s{st+4}, 15")
        a(f"s_lshl_b32 s{st}, s{st}, 7")
        a(f"s_add_u32 s{st}, s{st}, s{s_mbg}")
        a(f"s_lshl_b32 s{st}, s{st}, 10")
        a(f"s_lshr_b32 s{st+1}, s{st+4}, 4")
        a(f"s_lshl_b32 s{st+1}, s{st+1}, 21")
        a(f"s_add_u32 s{st}, s{st}, s{st+1}")
        a(f"s_cmp_ge_u32 s{st+4}, 32")
        a(f"s_cbranch_scc1 {lv}")
        a(f"s_cmp_lt_u32 s{st+4}, 16")
        a(f"s_cselect_b32 s{st+2}, {hexf(QSCALE)}, 1.0")
        for t in range(2):
            c = g.accreg(i, 0) + 8 * t
            for r in range(8):
                a(f"v_mul_f32 v{c+r}, s{st+2}, v{c+r}")
            p = pk + 4 * t
            pack8(a, c, p)
            a(f"s_add_u32 s{st+3}, s{st}, {t * 65536}")
            a(f"buffer_store_dwordx4 v[{p}:{p+3}], v{vo}, s[{WSP}:{WSP+3}], s{st+3} offen")
        a(f"s_branch {ld}")
        a.label(lv)
        for t in range(2):
            c = g.accreg(i, 0) + 8 * t
            p = pk + 4 * t
            pack8(a, c, p)
            a(f"buffer_store_dwordx4 v[{p}:{p+3}], v{vov}, s[{WSP}:{WSP+3}], s{st} offen offset:{t*512}")
        a.label(ld)
        a("s_nop 1")
    assert WS_Q == 0 and WS_K == 2 * MB and WS_V == 4 * MB
    for lab, sw in ((L['0s'], [True, True]), (L['0n'], [False, False])):
        a.label(lab)
        T.i = Ti
        g.mainloop(None, None, swap=sw, hook=hook0, T=T, stage_stamps=True)
        T.stamp()
        if lab == L['0s']:
            a(f"s_branch {L['e0']}")
    a.label(L['e0'])
    a(f"v_add_f32 v{stat}, v{sacc}, v{sacc+1}")
    a(f"v_add_f32 v{stat+1}, v{sacc+2}, v{sacc+3}")
    a(f"v_mov_b32 v{tmp+2}, v{stat}")
    a(f"v_mov_b32 v{tmp+3}, v{stat+1}")
    a("s_nop 1")
    a(f"v_permlane32_swap_b32 v{tmp+2}, v{stat}")
    a(f"v_permlane32_swap_b32 v{tmp+3}, v{stat+1}")
    a(f"v_add_f32 v{stat}, v{stat}, v{tmp+2}")
    a(f"v_add_f32 v{stat+1}, v{stat+1}, v{tmp+3}")
    a(f"s_lshl_b32 s{st}, s{s_wm}, 8")
    a(f"v_lshlrev_b32 v{tmp}, 3, v{vl32}")
    a(f"v_add_u32 v{tmp}, s{st}, v{tmp}")
    a(f"ds_write_b64 v{tmp}, v[{stat}:{stat+1}]")
    a("s_waitcnt lgkmcnt(0)")
    a("s_barrier")
    qkv_epi(0); qkv_epi(1)
    ldone = a.newlabel("k1_done")
    a(f"s_branch {ldone}")
    a.label(L['w1'])
    a(f"s_cmp_lt_u32 s{s_f0}, 32")
    a(f"s_cbranch_scc1 {L['1n']}")
    for lab, sw in ((L['1s'], [True, False]), (L['1n'], [False, False])):
        a.label(lab)
        T.i = Ti
        g.mainloop(None, None, swap=sw, hook=hook1, T=T, stage_stamps=True)
        T.stamp()
        if lab == L['1s']:
            a(f"s_branch {L['e1']}")
    a.label(L['e1'])
    a(f"v_add_f32 v{sacc}, v{sacc}, v{sacc+1}")
    a(f"v_add_f32 v{sacc+2}, v{sacc+2}, v{sacc+3}")
    a(f"v_add_f32 v{cs}, v{sacc}, v{sacc+2}")
    a(f"v_mov_b32 v{tmp+2}, v{cs}")
    a("s_nop 1")
    a(f"v_permlane32_swap_b32 v{tmp+2}, v{cs}")
    a(f"v_add_f32 v{cs}, v{cs}, v{tmp+2}")
    a(f"s_lshl_b32 s{st}, s{s_wm}, 7")
    a(f"v_lshlrev_b32 v{tmp}, 2, v{vl32}")
    a(f"v_add_u32 v{tmp}, s{st}, v{tmp}")
    a(f"ds_write_b32 v{tmp}, v{cs} offset:2048")
    a(f"v_lshlrev_b32 v{tmp+1}, 4, v{vh}")
    a(f"v_add_u32 v{tmp+1}, s{st}, v{tmp+1}")
    a("s_waitcnt lgkmcnt(0)")
    for aa in range(4):
        a(f"ds_read_b128 v[{csr+4*aa}:{csr+4*aa+3}], v{tmp+1} offset:{2048 + aa * 32}")
    a("s_barrier")
    a(f"s_lshl_b32 s{st}, s{s_wm}, 8")
    a(f"v_lshlrev_b32 v{tmp}, 3, v{vl32}")
    a(f"v_add_u32 v{tmp}, s{st}, v{tmp}")
    a(f"ds_read_b64 v[{stat}:{stat+1}], v{tmp}")
    qkv_epi(0)
    a("s_waitcnt lgkmcnt(0)")
    a(f"v_mul_f32 v{mean}, {hexf(1/512)}, v{stat}")
    a(f"v_mul_f32 v{stat+1}, {hexf(1/512)}, v{stat+1}")
    a(f"v_fma_f32 v{stat+1}, -v{mean}, v{mean}, v{stat+1}")
    a(f"v_max_f32 v{stat+1}, 0, v{stat+1}")
    a(f"v_add_f32 v{stat+1}, {hexf(1e-5)}, v{stat+1}")
    a(f"v_rsq_f32 v{rstd}, v{stat+1}")
    a(f"s_lshl_b32 s{st}, s{s_j}, 1")
    a(f"s_lshl_b32 s{st+1}, s{s_mbg}, 5")
    a(f"s_add_u32 s{st}, s{st}, s{st+1}")
    a(f"s_lshl_b32 s{st}, s{st}, 10")
    a(f"s_add_u32 s{st}, s{st}, {WS_H}")
    c = g.accreg(1, 0)
    for r in range(16):
        a(f"v_fma_f32 v{c+r}, -v{mean}, v{csr+r}, v{c+r}")
    for r in range(16):
        a(f"v_mul_f32 v{c+r}, v{c+r}, v{rstd}")
    gelu_vec(a, [c + r for r in range(16)], [cst + r for r in range(16)], vk1, s_k2)
    for t in range(2):
        p = pk + 4 * t
        pack8(a, c + 8 * t, p)
        a(f"buffer_store_dwordx4 v[{p}:{p+3}], v{vo}, s[{WSP}:{WSP+3}], s{st} offen offset:{t*1024}")
    a.label(ldone)
    T.stamp()
    if stamps:
        a("s_waitcnt vmcnt(0)")
        T.stamp()
    T.store(WSP, tmp, st, s_wave)
    a.label(end)
    a("s_endpgm")
    return dict(name=name, vgpr=168, sgpr=100, grid=256, block=768, lds=SLOTS * STB)
```

```python
from asmlib import *
from common import *
from gemm import *
from broles import std_prologue, RING
from broles3 import *
from attn import attn_role, ATT_LDS

def publish_flag(a, C_tmp, st, s_wave, WS, s_off):
    l = a.newlabel("pub")
    a("s_waitcnt vmcnt(0)")
    a("s_barrier")
    a(f"s_cmp_lg_u32 s{s_wave}, 0")
    a(f"s_cbranch_scc1 {l}")
    a(f"v_mov_b32 v{C_tmp}, 1")
    a(f"v_mov_b32 v{C_tmp+1}, 0")
    a("s_mov_b64 exec, 1")
    a(f"buffer_store_dword v{C_tmp}, v{C_tmp+1}, s[{WS}:{WS+3}], s{s_off} offen sc1")
    a("s_mov_b64 exec, -1")
    a.label(l)

def wait_flags(a, C_tmp, vlane, s_wave, WS, s_off, n, s_lim):
    l = a.newlabel("wf"); ld = a.newlabel("wfd")
    a(f"s_cmp_lg_u32 s{s_wave}, 0")
    a(f"s_cbranch_scc1 {ld}")
    a(f"v_lshlrev_b32 v{C_tmp+1}, 2, v{vlane}")
    a(f"s_mov_b64 exec, {(1 << n) - 1:#x}")
    a(f"s_mov_b32 s{s_lim}, 200000")
    a.label(l)
    a(f"buffer_load_dword v{C_tmp}, v{C_tmp+1}, s[{WS}:{WS+3}], s{s_off} offen sc1")
    a("s_waitcnt vmcnt(0)")
    a(f"v_cmp_ne_u32 vcc, 1, v{C_tmp}")
    a("s_nop 1")
    a("s_cmp_eq_u64 vcc, 0")
    lo = a.newlabel("wfo")
    a(f"s_cbranch_scc1 {lo}")
    a("s_sleep 4")
    a(f"s_sub_u32 s{s_lim}, s{s_lim}, 1")
    a(f"s_cmp_lg_u32 s{s_lim}, 0")
    a(f"s_cbranch_scc1 {l}")
    a.label(lo)
    a("s_mov_b64 exec, -1")
    a.label(ld)
    a("s_barrier")

def gen_k2(a, name="k2_kernel", stamps=False, bprio=2, lag=6, aprio=0, only=None, cluster=False, toggle=0, noepi=False, astart=False):
    V = Regs(1, 128, 'v'); S = Regs(36, 84, 's')
    end, vlane, s_wave, SR = std_prologue(a, name, V, S, 512, False)
    T = Stamps(a, 84, 8, stamps)
    T.rstamp()
    WS = SR['WS']
    lb = a.newlabel("k2_b")
    a("s_cmp_ge_u32 s2, 256")
    a(f"s_cbranch_scc1 {lb}")
    vm, sm = V.mark(), S.mark()
    if aprio: a(f"s_setprio {aprio}")
    if astart: a("s_setprio 3")
    T.stamp()
    r = attn_role(a, V, S, vlane=vlane, s_wave=s_wave, s_unit=2, WSP=WS, ostore_flags="sc1", lag=lag, cluster=cluster, toggle=toggle, prog=(98, 127, 96, 97) if stamps else None)
    st = r['st']
    a(f"s_lshr_b32 s{st}, s{r['s_mb']}, 3")
    a(f"s_lshl_b32 s{st}, s{st}, 5")
    a(f"s_add_u32 s{st}, s{st}, s{r['s_head']}")
    a(f"s_lshl_b32 s{st}, s{st}, 2")
    a(f"s_add_u32 s{st}, s{st}, {WS_F3}")
    publish_flag(a, r['tmp'], st, s_wave, WS, st)
    T.rstamp()
    T.stamp()
    T.store(WS, r['tmp'], st, s_wave, slot=2)
    if stamps:
        a(f"s_lshl_b32 s{st}, s2, 3")
        a(f"s_add_u32 s{st}, s{st}, s{s_wave}")
        a(f"s_lshl_b32 s{st}, s{st}, 6")
        a(f"s_add_u32 s{st}, s{st}, {WS_DBG + 3 * 0x80000}")
        a(f"v_lshlrev_b32 v{r['tmp']}, 2, v{vlane}")
        a("v_writelane_b32 v127, s96, 8")
        a("v_writelane_b32 v127, s97, 9")
        a("s_mov_b64 exec, 0xffff")
        a(f"buffer_store_dword v127, v{r['tmp']}, s[{WS}:{WS+3}], s{st} offen")
    a(f"s_branch {end}")
    vh_att = V.high
    V.release(vm); S.release(sm)
    a.label(lb)
    T.i = 1
    if only == 'attn': a(f"s_branch {end}")
    a(f"s_cmp_ge_u32 s{s_wave}, 4")
    a(f"s_cbranch_scc1 {end}")
    if bprio: a(f"s_setprio {bprio}")
    s_unit = S.alloc("unit"); s_f = S.alloc("sf")
    a(f"s_sub_u32 s{s_unit}, s2, 256")
    C = bctx(a, V, S, vlane, s_wave, s_unit)
    if noepi:
        a.filt = lambda l: l.startswith(("v_pk_", "v_exp", "v_rcp", "v_cvt_pk", "ds_write_b128"))
    def pub1():
        a(f"s_lshr_b32 s{s_f}, s{C.s_mt}, 1")
        a(f"s_lshl_b32 s{s_f}, s{s_f}, 4")
        a(f"s_and_b32 s{C.st}, s{C.s_mt}, 1")
        a(f"s_lshl_b32 s{C.st}, s{C.st}, 3")
        a(f"s_add_u32 s{s_f}, s{s_f}, s{C.st}")
        a(f"s_add_u32 s{s_f}, s{s_f}, s{C.s_nt}")
        a(f"s_lshl_b32 s{s_f}, s{s_f}, 2")
        a(f"s_add_u32 s{s_f}, s{s_f}, {WS_F1}")
        publish_flag(a, C.tmp, C.st, s_wave, WS, s_f)
    role_g3(a, V, S, C, SR, store_flags="sc1", publish=pub1)
    T.rstamp()
    if only == 'g3': a(f"s_branch {end}")
    l5 = a.newlabel("k2_g5")
    def wait1(vmq):
        a(f"s_lshl_b32 s{s_f}, s{C.g4_mb}, 6")
        a(f"s_add_u32 s{s_f}, s{s_f}, {WS_F1}")
        wait_flags(a, C.tmp, vlane, s_wave, WS, s_f, 16, C.st)
        T.rstamp()
    def pub2():
        a(f"s_lshl_b32 s{s_f}, s{C.g4_mb}, 4")
        a(f"s_add_u32 s{s_f}, s{s_f}, s{C.g4_nb}")
        a(f"s_lshl_b32 s{s_f}, s{s_f}, 2")
        a(f"s_add_u32 s{s_f}, s{s_f}, {WS_F2}")
        publish_flag(a, C.tmp, C.st, s_wave, WS, s_f)
    role_g4(a, V, S, C, SR, l5, store_flags="sc1", wait_in=wait1, publish=pub2)
    a.label(l5)
    if only == 'g4': a(f"s_branch {end}")
    T.i = 3
    T.rstamp()
    def wait2(vmq):
        a(f"s_lshr_b32 s{s_f}, s{C.s_mt}, 1")
        a(f"s_lshl_b32 s{s_f}, s{s_f}, 6")
        a(f"s_add_u32 s{s_f}, s{s_f}, {WS_F2}")
        wait_flags(a, C.tmp, vlane, s_wave, WS, s_f, 14, C.st)
        T.rstamp()
    def wait3(vmq):
        T.rstamp()
        a(f"s_lshr_b32 s{s_f}, s{C.s_mt}, 2")
        a(f"s_lshl_b32 s{s_f}, s{s_f}, 7")
        a(f"s_add_u32 s{s_f}, s{s_f}, {WS_F3}")
        wait_flags(a, C.tmp, vlane, s_wave, WS, s_f, 32, C.st)
        T.rstamp()
    role_g5(a, V, S, C, SR, wait_h3=wait2, wait_o=wait3)
    T.rstamp()
    T.store(WS, C.tmp, C.st, s_wave, slot=2)
    a.filt = None
    a.label(end)
    a("s_endpgm")
    return dict(name=name, vgpr=128, sgpr=100, grid=512, block=512, lds=max(RING, ATT_LDS))
```

```python
from asmlib import *
from common import *
from gemm import VMQ
from gemm3 import G3, DBG
from broles import std_prologue, RING, unpack8, halves_sum, Ctx
from broles2 import P2
import broles3 as B3
from attn import attn_role, ATT_LDS

def wave_publish(a, tmp, WS, s_off):
    a("s_waitcnt vmcnt(0)")
    a(f"v_mov_b32 v{tmp}, 1")
    a(f"v_mov_b32 v{tmp+1}, 0")
    a("s_mov_b64 exec, 1")
    a(f"buffer_store_dword v{tmp}, v{tmp+1}, s[{WS}:{WS+3}], s{s_off} offen sc1")
    a("s_mov_b64 exec, -1")

def wg_publish(a, tmp, WS, s_off, lds_off, s_t):
    l = a.newlabel("wgp")
    a("s_waitcnt vmcnt(0)")
    a(f"v_mov_b32 v{tmp}, 1")
    a(f"v_mov_b32 v{tmp+1}, {lds_off}")
    a("s_mov_b64 exec, 1")
    a(f"ds_add_rtn_u32 v{tmp+2}, v{tmp+1}, v{tmp}")
    a("s_waitcnt lgkmcnt(0)")
    a(f"v_readfirstlane_b32 s{s_t}, v{tmp+2}")
    a(f"v_mov_b32 v{tmp+1}, 0")
    a(f"s_cmp_lg_u32 s{s_t}, 3")
    a(f"s_cbranch_scc1 {l}")
    a(f"buffer_store_dword v{tmp}, v{tmp+1}, s[{WS}:{WS+3}], s{s_off} offen sc1")
    a.label(l)
    a("s_mov_b64 exec, -1")

def poll(a, tmp, vl4, WS, s_off, n, s_lim, s_w4, slp=6):
    l = a.newlabel("wf"); lo = a.newlabel("wfo"); ld = a.newlabel("wfd")
    a(f"s_cmp_lg_u32 s{s_w4}, 0")
    a(f"s_cbranch_scc1 {ld}")
    if n < 64:
        assert n <= 32
        a(f"s_mov_b64 exec, {(1 << n) - 1:#x}")
    a(f"s_mov_b32 s{s_lim}, 200000")
    a.label(l)
    a(f"buffer_load_dword v{tmp}, v{vl4}, s[{WS}:{WS+3}], s{s_off} offen sc1")
    a("s_waitcnt vmcnt(0)")
    a(f"v_cmp_ne_u32 vcc, 1, v{tmp}")
    a("s_nop 1")
    a("s_cmp_eq_u64 vcc, 0")
    a(f"s_cbranch_scc1 {lo}")
    a(f"s_sleep {slp}")
    a(f"s_sub_u32 s{s_lim}, s{s_lim}, 1")
    a(f"s_cmp_lg_u32 s{s_lim}, 0")
    a(f"s_cbranch_scc1 {l}")
    a.label(lo)
    if n < 64: a("s_mov_b64 exec, -1")
    a.label(ld)
    a("s_barrier")

def cons_loop(g, T=None):
    a = g.a
    a("s_barrier")
    if T: T.rstamp()
    for n in range(g.PD): g.read_frags(n)
    total = g.nst * g.ksw
    for n in range(total):
        m = n + g.PD
        if m < total:
            if m % g.ksw == 0: a("s_barrier")
            g.read_frags(m)
        a(f"s_waitcnt lgkmcnt({min(g.PD, total - 1 - n) * 3 * g.nf})")
        g.mfmas(n % g.nbuf)

def reads64(a, C):
    t = C.tmp; st = C.st; vlane = C.vlane
    a(f"s_lshl_b32 s{st}, s{C.s_tj}, 12")
    a(f"v_add_u32 v{C.xa}, s{st}, v{C.vl16}")
    a(f"v_add_u32 v{C.xa+1}, 0x10000, v{C.xa}")
    a(f"v_bfe_u32 v{C.vr}, v{vlane}, 2, 2")
    a(f"v_and_b32 v{t}, 3, v{vlane}")
    a(f"v_lshlrev_b32 v{t}, 3, v{t}")
    a(f"v_bfe_u32 v{t+1}, v{vlane}, 4, 1")
    a(f"v_lshl_add_u32 v{C.lp}, v{t+1}, 5, v{t}")
    a(f"v_lshl_add_u32 v{t+1}, v{C.vh}, 2, v{C.vr}")
    a(f"v_lshl_add_u32 v{t+2}, v{t+1}, 7, v{C.lp}")
    a(f"v_lshrrev_b32 v{t}, 1, v{C.vr}")
    a(f"v_xor_b32 v{t}, s{C.s_ti}, v{t}")
    a(f"v_lshl_add_u32 v{C.wa}, v{t}, 6, v{t+2}")
    a(f"v_add_u32 v{C.wa+1}, 0x10000, v{C.wa}")

def cons64(a, C, name, K, acc, xf, wf):
    return G3(a, VMQ(), name=name, TN=64, KC=64, K=K, ksw=4, ks_stage=4, slots=5, acc=acc, xf=xf, wf=wf,
              xa=[C.xa, C.xa + 1], wa=[[C.wa, C.wa + 1]], xv=None, wv=None, wv2=None, s_xo=None, s_wo=None, s_m0=None,
              xstep=0, wstep=0, xjstride=0, PD=3, nf=1)

def prod_loop(g, xsrd, wsrd, issued, extra=None):
    a = g.a
    nd = issued
    for sp in range(g.nst):
        g.wait_stage(sp)
        a("s_barrier")
        if nd <= min(g.nst - 1, max(sp - 2, -1) + g.slots):
            g.issue(nd, xsrd, wsrd); nd += 1
        if extra: extra(sp)

def gen_k3(a, name="k2_kernel", stamps=False, bprio=2, lag=6, toggle=1, only=None, wpf=False, g3st=False, apf=True):
    V = Regs(1, 128, 'v'); S = Regs(36, 84, 's')
    end, vlane, s_wave, SR = std_prologue(a, name, V, S, 512, False)
    T = Stamps(a, 84, 8, stamps)
    T.rstamp()
    WS = SR['WS']
    lb = a.newlabel("k2_b")
    a("s_cmp_ge_u32 s2, 256")
    a(f"s_cbranch_scc1 {lb}")
    vm, sm = V.mark(), S.mark()
    a("s_setprio 3")
    T.stamp()
    r = attn_role(a, V, S, vlane=vlane, s_wave=s_wave, s_unit=2, WSP=WS, ostore_flags="sc1", lag=lag, toggle=toggle, pf=SR if apf else None)
    st = r['st']
    a(f"s_lshr_b32 s{st}, s{r['s_mb']}, 3")
    a(f"s_lshl_b32 s{st}, s{st}, 5")
    a(f"s_add_u32 s{st}, s{st}, s{r['s_head']}")
    a(f"s_lshl_b32 s{st}, s{st}, 2")
    a(f"s_add_u32 s{st}, s{st}, {WS_G3}")
    from k2 import publish_flag
    publish_flag(a, r['tmp'], st, s_wave, WS, st)
    T.rstamp(); T.stamp()
    T.store(WS, r['tmp'], st, s_wave, slot=2)
    a(f"s_branch {end}")
    V.release(vm); S.release(sm)
    a.label(lb)
    T.i = 1
    if only == 'attn': a(f"s_branch {end}")
    a(f"s_setprio {bprio}")
    s_unit = S.alloc("unit"); s_f = S.alloc("sf"); s_w4 = S.alloc("w4")
    a(f"s_sub_u32 s{s_unit}, s2, 256")
    a(f"s_and_b32 s{s_w4}, s{s_wave}, 3")
    C = B3.bctx(a, V, S, vlane, s_w4, s_unit)
    st = C.st; tmp = C.tmp
    s_mb = S.alloc("g4mb"); s_nb = S.alloc("g4nb"); s_q = S.alloc("q"); s_r0 = S.alloc("r0")
    a(f"s_lshr_b32 s{s_q}, s{s_unit}, 3")
    a(f"s_and_b32 s{st}, s{s_unit}, 7")
    a(f"s_lshl_b32 s{s_mb}, s{st}, 1")
    a(f"s_and_b32 s{st+2}, s{s_q}, 1")
    a(f"s_add_u32 s{s_mb}, s{s_mb}, s{st+2}")
    a(f"s_lshr_b32 s{s_nb}, s{s_q}, 1")
    lprod = a.newlabel("k2_prod")
    a(f"s_cmp_ge_u32 s{s_wave}, 4")
    a(f"s_cbranch_scc1 {lprod}")
    vmk, smk = V.mark(), S.mark()
    acc = V.alloc("acc", 64, 4); xf = V.alloc("xf", 16, 4); wf = V.alloc("wf", 16, 4); ex = V.alloc("ex", 8, 4)
    regs = (acc, xf, wf)
    dummy = VMQ()
    reads64(a, C)
    a(f"s_lshl_b32 s{st+4}, s{C.s_kb}, 5")
    a(f"s_lshl_b32 s{st+5}, s{C.s_mbg}, 15")
    a(f"s_add_u32 s{st+5}, s{st+5}, s{st+4}")
    a(f"v_lshlrev_b32 v{tmp+6}, 3, v{C.vh}")
    a(f"v_lshl_add_u32 v{tmp+7}, v{C.vl32}, 10, v{tmp+6}")
    R = acc; X = acc + 16; G = acc + 32; Rr = acc + 48; xr = ex; gw = ex + 8 if False else None
    xr = Rr; gw = Rr + 8
    for aa in range(4):
        a(f"buffer_load_dwordx2 v[{xr+2*aa}:{xr+2*aa+1}], v{tmp+7}, s[{SR['X']}:{SR['X']+3}], s{st+5} offen offset:{16*aa}")
    for aa in range(4):
        a(f"buffer_load_dwordx2 v[{gw+2*aa}:{gw+2*aa+1}], v{tmp+6}, s[{SR['GW']}:{SR['GW']+3}], s{st+4} offen offset:{16*aa}")
    g = cons64(a, C, "g3", 512, R, xf, wf)
    if g3st: T.rstamp()
    a("s_waitcnt vmcnt(0)")
    unpack8(a, xr, X); unpack8(a, xr + 4, X + 8)
    unpack8(a, gw, G); unpack8(a, gw + 4, G + 8)
    s2 = ex
    a(f"v_pk_mul_f32 {P2(s2+4)}, {P2(X)}, {P2(G)}")
    for r_ in range(2, 16, 2):
        a(f"v_pk_fma_f32 {P2(s2+4)}, {P2(X+r_)}, {P2(G+r_)}, {P2(s2+4)}")
    a(f"s_lshl_b32 s{st}, s{C.s_mbg}, 5")
    a(f"s_add_u32 s{st}, s{st}, s{C.s_kb}")
    a(f"s_lshl_b32 s{st}, s{st}, 10")
    a(f"s_add_u32 s{st}, s{st}, {WS_X1}")
    a(f"s_lshl_b32 s{st+1}, s{C.s_mbg}, 13")
    a(f"s_lshl_b32 s{st+2}, s{C.s_kb}, 3")
    a(f"s_add_u32 s{st+1}, s{st+1}, s{st+2}")
    a(f"s_add_u32 s{st+1}, s{st+1}, {WS_ST}")
    cons_loop(g, T if g3st else None)
    if g3st: T.rstamp()
    pk = G; sv = G + 8
    a("s_nop 7")
    a("s_nop 3")
    for r_ in range(0, 16, 2): a(f"v_pk_add_f32 {P2(R+r_)}, {P2(R+r_)}, {P2(X+r_)}")
    pack8(a, R, pk); pack8(a, R + 8, pk + 4)
    for t in range(2):
        a(f"buffer_store_dwordx4 v[{pk+4*t}:{pk+4*t+3}], v{C.vl16}, s[{WS}:{WS+3}], s{st} offen offset:{1024*t} sc1")
    unpack8(a, pk, Rr); unpack8(a, pk + 4, Rr + 8)
    a(f"v_pk_add_f32 {P2(s2)}, {P2(Rr)}, {P2(Rr+2)}")
    a(f"v_pk_mul_f32 {P2(s2+2)}, {P2(Rr)}, {P2(Rr)}")
    for r_ in range(2, 16, 2):
        if r_ >= 4: a(f"v_pk_add_f32 {P2(s2)}, {P2(s2)}, {P2(Rr+r_)}")
        a(f"v_pk_fma_f32 {P2(s2+2)}, {P2(Rr+r_)}, {P2(Rr+r_)}, {P2(s2+2)}")
    for c in range(3): a(f"v_add_f32 v{sv+c}, v{s2+2*c}, v{s2+2*c+1}")
    halves_sum(a, [sv, sv + 1, sv + 2], [tmp + 2, tmp + 3, tmp + 4])
    a(f"v_lshlrev_b32 v{tmp}, 8, v{C.vl32}")
    a("s_mov_b64 exec, 0xffffffff")
    a(f"buffer_store_dwordx4 v[{sv}:{sv+3}], v{tmp}, s[{WS}:{WS+3}], s{st+1} offen sc1")
    a("s_mov_b64 exec, -1")
    a(f"v_mov_b32 v{tmp}, 0")
    a(f"v_mov_b32 v{tmp+1}, 4096")
    a(f"ds_write_b32 v{tmp+1}, v{tmp}")
    a("s_waitcnt lgkmcnt(0)")
    a("s_barrier")
    if g3st: T.rstamp()
    a(f"s_lshr_b32 s{s_f}, s{C.s_mt}, 1")
    a(f"s_lshl_b32 s{s_f}, s{s_f}, 6")
    a(f"s_and_b32 s{st}, s{C.s_mt}, 1")
    a(f"s_lshl_b32 s{st}, s{st}, 3")
    a(f"s_add_u32 s{s_f}, s{s_f}, s{st}")
    a(f"s_add_u32 s{s_f}, s{s_f}, s{C.s_nt}")
    a(f"s_lshl_b32 s{s_f}, s{s_f}, 2")
    a(f"s_add_u32 s{s_f}, s{s_f}, {WS_G1}")
    if g3st: T.rstamp()
    wg_publish(a, tmp, WS, s_f, 4096, st)
    T.rstamp()
    if g3st:
        T.store(WS, tmp, st, s_wave, slot=2)
        T.enabled = False
    lc5 = a.newlabel("k2_c5")
    a(f"s_cmp_ge_u32 s{s_q}, 28")
    a(f"s_cbranch_scc1 {lc5}")
    s_wn = C.s_ti; s_wm = C.s_tj; s_mbg = s_r0
    xa = C.xa; wa = C.wa; cs = 0; lnp = ex
    g = G3(a, dummy, name="g4", TN=128, KC=32, K=512, ksw=2, ks_stage=2, slots=5, acc=acc, xf=xf, wf=wf,
           xa=[xa, xa + 1], wa=[[wa, wa + 1], [wa + 2, wa + 3]], xv=None, wv=None, wv2=None,
           s_xo=None, s_wo=None, s_m0=None, xstep=0, wstep=0, xjstride=2048)
    a(f"s_lshl_b32 s{s_mbg}, s{s_mb}, 2")
    a(f"s_lshl_b32 s{st}, s{s_wm}, 1")
    a(f"s_add_u32 s{s_mbg}, s{s_mbg}, s{st}")
    a(f"s_lshl_b32 s{st}, s{s_wm}, 12")
    a(f"v_add_u32 v{xa}, s{st}, v{C.vl16}")
    a(f"v_add_u32 v{xa+1}, 0x10000, v{xa}")
    a(f"v_lshl_add_u32 v{tmp+1}, v{C.vh}, 2, v{C.vr}")
    a(f"v_lshl_add_u32 v{tmp+1}, v{tmp+1}, 8, v{C.lp}")
    a(f"s_lshl_b32 s{st}, s{s_wn}, 1")
    a(f"v_xor_b32 v{tmp}, s{st}, v{C.vr}")
    a(f"v_lshl_add_u32 v{wa}, v{tmp}, 6, v{tmp+1}")
    a(f"v_xor_b32 v{wa+2}, 64, v{wa}")
    a(f"v_add_u32 v{wa+1}, 0x10000, v{wa}")
    a(f"v_add_u32 v{wa+3}, 0x10000, v{wa+2}")
    a(f"v_lshlrev_b32 v{tmp+5}, 2, v{vlane}")
    a(f"s_lshl_b32 s{s_f}, s{s_mb}, 8")
    a(f"s_add_u32 s{s_f}, s{s_f}, {WS_G1}")
    poll(a, tmp, tmp + 5, WS, s_f, 16, st, s_w4)
    T.rstamp()
    cons_loop(g)
    a("s_barrier")
    a(f"s_lshl_b32 s{st}, s{s_wn}, 8")
    a(f"v_lshlrev_b32 v{tmp+1}, 4, v{C.vh}")
    a(f"v_add_u32 v{tmp+1}, s{st}, v{tmp+1}")
    a(f"s_lshl_b32 s{st}, s{s_wm}, 10")
    a(f"v_lshlrev_b32 v{tmp}, 4, v{C.vl32}")
    a(f"v_add_u32 v{tmp}, s{st}, v{tmp}")
    a("s_barrier")
    assert wf == xf + 16
    for i in range(2):
        for aa in range(4):
            a(f"ds_read_b128 v[{xf+16*i+4*aa}:{xf+16*i+4*aa+3}], v{tmp+1} offset:{i*128 + aa*32}")
    for j in range(2):
        a(f"ds_read_b128 v[{lnp+4*j}:{lnp+4*j+3}], v{tmp} offset:{1024 + 512*j}")
    a(f"s_mul_i32 s{st}, s{s_mbg}, 112")
    a(f"s_lshl_b32 s{st+1}, s{s_nb}, 3")
    a(f"s_add_u32 s{st}, s{st}, s{st+1}")
    a(f"s_lshl_b32 s{st+1}, s{s_wn}, 2")
    a(f"s_add_u32 s{st}, s{st}, s{st+1}")
    a(f"s_lshl_b32 s{st}, s{st}, 10")
    a(f"s_add_u32 s{st}, s{st}, {WS_H3}")
    a(f"s_add_u32 s{st+1}, s{st}, {112 * 1024}")
    a("s_waitcnt lgkmcnt(0)")
    for i in range(2):
        for j in range(2):
            c = g.accreg(i, j); L = lnp + 4 * j
            for r_ in range(0, 16, 2):
                a(f"v_pk_fma_f32 {P2(c+r_)}, {P2(xf+16*i+r_)}, {P2(L+2)}, {P2(c+r_)} op_sel:[0,1,0] op_sel_hi:[1,1,1]")
    ts = xf
    for i in range(2):
        for j in range(2):
            c = g.accreg(i, j); L = lnp + 4 * j
            pr = [(c + r_, ts + r_) for r_ in range(0, 16, 2)]
            for x, t in pr: a(f"v_pk_mul_f32 {P2(t)}, {P2(x)}, {P2(x)}")
            for x, t in pr: a(f"v_pk_fma_f32 {P2(t)}, {P2(t)}, {P2(L)}, {P2(L)} op_sel:[0,1,0] op_sel_hi:[1,1,0]")
            for x, t in pr: a(f"v_pk_mul_f32 {P2(t)}, {P2(t)}, {P2(x)}")
            for x, t in pr: a(f"v_exp_f32 v{t}, v{t}"); a(f"v_exp_f32 v{t+1}, v{t+1}")
            for x, t in pr: a(f"v_pk_fma_f32 {P2(t)}, {P2(t)}, {P2(L+2)}, {P2(L+2)} op_sel:[0,0,0] op_sel_hi:[1,0,0]")
            for x, t in pr: a(f"v_rcp_f32 v{t}, v{t}"); a(f"v_rcp_f32 v{t+1}, v{t+1}")
            for x, t in pr: a(f"v_pk_mul_f32 {P2(x)}, {P2(x)}, {P2(t)}")
            pack8(a, c, c); pack8(a, c + 8, c + 4)
            for t_ in range(2):
                a(f"buffer_store_dwordx4 v[{c+4*t_}:{c+4*t_+3}], v{C.vl16}, s[{WS}:{WS+3}], s{st+j} offen offset:{(2*i+t_)*1024} sc1")
    a("s_barrier")
    a(f"s_lshl_b32 s{s_f}, s{s_mb}, 6")
    a(f"s_add_u32 s{s_f}, s{s_f}, s{s_nb}")
    a(f"s_lshl_b32 s{s_f}, s{s_f}, 2")
    a(f"s_add_u32 s{s_f}, s{s_f}, {WS_G2}")
    wg_publish(a, tmp, WS, s_f, 4096, st + 2)
    reads64(a, C)
    a.label(lc5)
    T.i = 3
    T.rstamp()
    Rb = ex; gt = tmp + 6
    a(f"v_lshlrev_b32 v{tmp+5}, 2, v{vlane}")
    a(f"s_lshr_b32 s{s_f}, s{C.s_mt}, 1")
    a(f"s_lshl_b32 s{s_f}, s{s_f}, 8")
    a(f"s_add_u32 s{s_f}, s{s_f}, {WS_G2}")
    poll(a, tmp, tmp + 5, WS, s_f, 14, st, s_w4)
    T.rstamp()
    a(f"s_lshl_b32 s{st}, s{C.s_mbg}, 5")
    a(f"s_add_u32 s{st}, s{st}, s{C.s_kb}")
    a(f"s_lshl_b32 s{st}, s{st}, 10")
    a(f"s_add_u32 s{st}, s{st}, {WS_X1}")
    for t in range(2):
        a(f"buffer_load_dwordx4 v[{Rb+4*t}:{Rb+4*t+3}], v{C.vl16}, s[{WS}:{WS+3}], s{st} offen offset:{1024*t}")
    rsb = acc + 32
    B3.load_rowstats(a, C, SR, C.s_mbg, rsb, 0)
    Bq = acc + 16; Xq = acc
    g = cons64(a, C, "g5b", 1792, Bq, xf, wf)
    cons_loop(g)
    a("s_barrier")
    T.rstamp()
    a("s_waitcnt vmcnt(0)")
    for p in (2, 10, 18, 26): a(f"v_add_f32 v{rsb+p}, v{rsb+p}, v{rsb+p+4}")
    a(f"v_add_f32 v{rsb+2}, v{rsb+2}, v{rsb+10}")
    a(f"v_add_f32 v{rsb+18}, v{rsb+18}, v{rsb+26}")
    a(f"v_add_f32 v{gt}, v{rsb+2}, v{rsb+18}")
    halves_sum(a, [gt], [tmp + 2])
    a(f"v_mul_f32 v{gt}, {hexf(-LOG2E)}, v{gt}")
    a(f"v_exp_f32 v{gt}, v{gt}")
    a("s_nop 0")
    a(f"v_add_f32 v{gt}, 1.0, v{gt}")
    a(f"v_rcp_f32 v{gt}, v{gt}")
    a("s_nop 0")
    a(f"v_sub_f32 v{gt+1}, 1.0, v{gt}")
    unpack8(a, Rb, Xq); unpack8(a, Rb + 4, Xq + 8)
    s_oo = s_r0
    a(f"s_lshl_b32 s{st+4}, s{C.s_kb}, 5")
    a(f"s_lshl_b32 s{s_oo}, s{C.s_mbg}, 15")
    a(f"s_add_u32 s{s_oo}, s{s_oo}, s{st+4}")
    a(f"v_lshlrev_b32 v{tmp+4}, 4, v{C.vh}")
    a(f"v_lshl_add_u32 v{tmp+4}, v{C.vl32}, 10, v{tmp+4}")
    a("s_nop 7")
    for r_ in range(0, 16, 2): a(f"v_pk_add_f32 {P2(Bq+r_)}, {P2(Bq+r_)}, {P2(Xq+r_)}")
    for r_ in range(0, 16, 2): a(f"v_pk_mul_f32 {P2(Bq+r_)}, {P2(Bq+r_)}, {P2(gt)} op_sel:[0,1] op_sel_hi:[1,1]")
    g = cons64(a, C, "g5a", 512, R, xf, wf)
    Xq = acc + 32
    a(f"s_lshr_b32 s{s_f}, s{C.s_mt}, 2")
    a(f"s_lshl_b32 s{s_f}, s{s_f}, 7")
    a(f"s_add_u32 s{s_f}, s{s_f}, {WS_G3}")
    poll(a, tmp, tmp + 5, WS, s_f, 32, st, s_w4, slp=3)
    cons_loop(g)
    T.rstamp()
    a("s_nop 7")
    a("s_nop 3")
    for r_ in range(0, 16, 2): a(f"v_pk_fma_f32 {P2(R+r_)}, {P2(R+r_)}, {P2(gt)}, {P2(Bq+r_)} op_sel_hi:[1,0,1]")
    pack8(a, R, Xq); pack8(a, R + 8, Xq + 4)
    a("s_nop 1")
    for t in range(2):
        X_ = Xq + 4 * t
        a(f"v_permlane32_swap_b32 v{X_}, v{X_+2}")
        a(f"v_permlane32_swap_b32 v{X_+1}, v{X_+3}")
        a(f"buffer_store_dwordx4 v[{X_}:{X_+3}], v{tmp+4}, s[{SR['OUT']}:{SR['OUT']+3}], s{s_oo} offen offset:{32*t}")
    T.rstamp()
    T.store(WS, tmp, st, s_wave, slot=2)
    a(f"s_branch {end}")
    V.release(vmk); S.release(smk)
    a.label(lprod)
    vmq = VMQ()
    xv = V.alloc("xv", 4); wv4 = V.alloc("wv4", 2); vl4 = V.alloc("vl4"); junk = V.alloc("junk", 32, 4)
    s_pf = S.alloc("pf")
    noregs = (0, 0, 0)
    a(f"v_lshlrev_b32 v{vl4}, 2, v{vlane}")
    g = B3.mk64(a, C, vmq, "g3", 512, [xv + i for i in range(4)], False, noregs)
    B3.set_offsets64(a, C, WS_H - 32768, 32)
    g.issue(0, None, SR['W2'], 'w'); g.issue(1, None, SR['W2'], 'w')
    a(f"v_lshlrev_b32 v{tmp+2}, 9, v{C.vh}")
    for gi, s_ in enumerate([-1, 1, -2, 2]):
        a(f"v_add_u32 v{tmp}, {32 + s_}, v{C.vl32}")
        a(f"v_lshrrev_b32 v{tmp+1}, 5, v{tmp}")
        a(f"v_lshl_add_u32 v{tmp+1}, v{tmp+1}, 15, v{tmp+2}")
        a(f"v_and_b32 v{tmp}, 31, v{tmp}")
        a(f"v_lshl_add_u32 v{xv+gi}, v{tmp}, 4, v{tmp+1}")
    lnb = a.newlabel("g3_nb"); lhi = a.newlabel("g3_hi")
    a(f"s_lshl_b32 s{st}, s{C.s_mt}, 1")
    a(f"s_add_u32 s{st}, s{st}, s{C.s_ti}")
    a(f"s_cmp_eq_u32 s{st}, 63")
    a(f"s_cbranch_scc1 {lhi}")
    a(f"s_cmp_lg_u32 s{st}, 0")
    a(f"s_cbranch_scc1 {lnb}")
    a(f"v_mov_b32 v{tmp}, 0x7f000000")
    a(f"v_cmp_gt_u32 vcc, 1, v{C.vl32}")
    a("s_nop 1")
    a(f"v_cndmask_b32 v{xv}, v{xv}, v{tmp}, vcc")
    a(f"v_cmp_gt_u32 vcc, 2, v{C.vl32}")
    a("s_nop 1")
    a(f"v_cndmask_b32 v{xv+2}, v{xv+2}, v{tmp}, vcc")
    a(f"s_branch {lnb}")
    a.label(lhi)
    a(f"v_mov_b32 v{tmp}, 0x7f000000")
    a(f"v_cmp_lt_u32 vcc, 30, v{C.vl32}")
    a("s_nop 1")
    a(f"v_cndmask_b32 v{xv+1}, v{xv+1}, v{tmp}, vcc")
    a(f"v_cmp_lt_u32 vcc, 29, v{C.vl32}")
    a("s_nop 1")
    a(f"v_cndmask_b32 v{xv+3}, v{xv+3}, v{tmp}, vcc")
    a.label(lnb)
    g.issue(0, WS, None, 'x'); g.issue(1, WS, None, 'x')
    for s in range(2, 5): g.issue(s, WS, SR['W2'])
    a(f"v_lshrrev_b32 v{tmp}, 4, v{vlane}")
    a(f"v_lshlrev_b32 v{tmp+1}, 2, v{tmp}")
    a(f"v_and_b32 v{tmp+2}, 15, v{vlane}")
    a(f"v_xor_b32 v{tmp+1}, v{tmp+1}, v{tmp+2}")
    a(f"v_mul_u32_u24 v{tmp}, 3584, v{tmp}")
    a(f"v_lshl_add_u32 v{wv4}, v{tmp+1}, 4, v{tmp}")
    a(f"v_add_u32 v{wv4+1}, {4 * 3584 - 1024}, v{wv4}")
    def l2_prefetch(srd, nkb):
        a(f"s_lshl_b32 s{s_pf}, s{s_q}, 2")
        a(f"s_add_u32 s{s_pf}, s{s_pf}, s{s_w4}")
        a(f"s_mul_i32 s{s_pf}, s{s_pf}, {nkb * 1024}")
        for i in range(nkb):
            j = junk + 4 * (i % 8)
            a(f"buffer_load_dwordx4 v[{j}:{j+3}], v{C.vl16}, s[{srd}:{srd+3}], s{s_pf} offen offset:{(i % 4) * 1024}")
            vmq.issue('pf')
            if i % 4 == 3 and i + 1 < nkb: a(f"s_add_u32 s{s_pf}, s{s_pf}, 4096")
    prod_loop(g, WS, SR['W2'], 5, extra=(lambda sp: l2_prefetch(SR['W3'], 14) if (sp == 4 and wpf) else None))
    a("s_barrier")
    lp5 = a.newlabel("k2_p5")
    a(f"s_cmp_ge_u32 s{s_q}, 28")
    ldo4 = a.newlabel("k2_do4")
    a(f"s_cbranch_scc0 {ldo4}")
    q_save = list(vmq.q)
    if wpf: l2_prefetch(SR['W4'], 14)
    vmq.q = q_save
    a(f"s_branch {lp5}")
    a.label(ldo4)
    g = G3(a, vmq, name="g4", TN=128, KC=32, K=512, ksw=2, ks_stage=2, slots=5, acc=0, xf=0, wf=0, xa=None, wa=None,
           xv=C.vl16, wv=wv4, wv2=wv4 + 1, s_xo=C.s_xo, s_wo=C.s_wo, s_m0=C.s_m0w, xstep=2048, wstep=32 * 3584, xjstride=2048,
           rot=(C.s_ri, C.s_rj, C.s_rt))
    g.kx = C.s_kx; g.kw = C.s_kw
    a(f"s_and_b32 s{st+2}, s{s_q}, 1")
    a(f"s_lshl_b32 s{st+2}, s{st+2}, 3")
    a(f"s_add_u32 s{st+2}, s{st+2}, s{s_nb}")
    a(f"s_and_b32 s{C.s_ri}, s{st+2}, 15")
    a(f"s_mov_b32 s{C.s_rj}, s{C.s_ri}")
    a(f"s_movk_i32 s{C.s_kx}, 2048")
    a(f"s_mov_b32 s{C.s_kw}, {32 * 3584}")
    a(f"s_mul_i32 s{C.s_wo}, s{s_w4}, {8 * 3584}")
    a(f"s_lshl_b32 s{st}, s{s_nb}, 8")
    a(f"s_add_u32 s{C.s_wo}, s{C.s_wo}, s{st}")
    a(f"s_mul_i32 s{st}, s{C.s_ri}, {32 * 3584}")
    a(f"s_add_u32 s{C.s_wo}, s{C.s_wo}, s{st}")
    a(f"s_lshl_b32 s{st}, s{s_mb}, 2")
    a(f"s_add_u32 s{st}, s{st}, s{s_w4}")
    a(f"s_lshl_b32 s{st}, s{st}, 5")
    a(f"s_lshl_b32 s{st+1}, s{C.s_ri}, 1")
    a(f"s_add_u32 s{st}, s{st}, s{st+1}")
    a(f"s_lshl_b32 s{st}, s{st}, 10")
    a(f"s_add_u32 s{C.s_xo}, s{st}, {WS_X1}")
    for s in range(5): g.issue(s, None, SR['W3'], 'w')
    cp = V.alloc("pcp", 8, 4); rs = junk; L = V.alloc("pL", 4, 4)
    a(f"s_lshl_b32 s{st}, s{s_nb}, 9")
    a(f"s_lshl_b32 s{st+1}, s{C.s_tj}, 8")
    a(f"s_add_u32 s{st}, s{st}, s{st+1}")
    a(f"s_add_u32 s{st}, s{st}, {WS_CS3}")
    for p in range(8):
        a(f"buffer_load_dword v{cp+p}, v{vl4}, s[{WS}:{WS+3}], s{st} offen")
        vmq.issue('cp')
        if p < 7: a(f"s_add_u32 s{st}, s{st}, {1792*4}")
    a("s_barrier")
    for s in range(5): g.issue(s, WS, None, 'x')
    a(f"s_lshl_b32 s{s_f}, s{s_mb}, 2")
    a(f"s_add_u32 s{s_f}, s{s_f}, s{s_w4}")
    B3.load_rowstats(a, C, SR, s_f, rs, 0)
    for _ in range(8): vmq.issue('rs')
    def g4_extra(sp):
        if sp == 12:
            vmq.wait(a, {'rs'})
            for p in range(0, 8, 4): a(f"v_pk_add_f32 {P2(cp+p)}, {P2(cp+p)}, {P2(cp+p+2)}")
            a(f"v_pk_add_f32 {P2(cp)}, {P2(cp)}, {P2(cp+4)}")
            a(f"v_add_f32 v{cp}, v{cp}, v{cp+1}")
            d = rs
            for p in (0, 8, 16, 24): a(f"v_pk_add_f32 {P2(d+p)}, {P2(d+p)}, {P2(d+p+4)}")
            a(f"v_pk_add_f32 {P2(d)}, {P2(d)}, {P2(d+8)}")
            a(f"v_pk_add_f32 {P2(d+16)}, {P2(d+16)}, {P2(d+24)}")
            a(f"v_pk_add_f32 {P2(d)}, {P2(d)}, {P2(d+16)}")
            halves_sum(a, [d, d + 1], [tmp + 2, tmp + 3])
            a(f"v_mul_f32 v{L+3}, {hexf(-1/512)}, v{d}")
            a(f"v_mul_f32 v{d+1}, {hexf(1/512)}, v{d+1}")
            a(f"v_fma_f32 v{d+1}, -v{L+3}, v{L+3}, v{d+1}")
            a(f"v_max_f32 v{d+1}, 0, v{d+1}")
            a(f"v_add_f32 v{d+1}, {hexf(1e-5)}, v{d+1}")
            a(f"v_rsq_f32 v{d+2}, v{d+1}")
            a(f"v_sqrt_f32 v{L+2}, v{d+1}")
            a(f"v_mul_f32 v{L}, {hexf(GK1)}, v{d+2}")
            a(f"v_mul_f32 v{d+3}, v{d+2}, v{d+2}")
            a(f"v_mul_f32 v{d+3}, v{d+3}, v{d+2}")
            a(f"v_mul_f32 v{L+1}, {hexf(GK2)}, v{d+3}")
            a(f"s_lshl_b32 s{st}, s{C.s_tj}, 8")
            a(f"v_add_u32 v{tmp+4}, s{st}, v{vl4}")
            a(f"s_lshl_b32 s{st}, s{s_w4}, 9")
            a(f"v_lshlrev_b32 v{tmp+5}, 4, v{C.vl32}")
            a(f"v_add_u32 v{tmp+5}, s{st}, v{tmp+5}")
            if wpf: l2_prefetch(SR['W4'], 14)
    prod_loop(g, WS, SR['W3'], 5, extra=g4_extra)
    a("s_barrier")
    a(f"ds_write_b32 v{tmp+4}, v{cp}")
    a(f"ds_write_b128 v{tmp+5}, v[{L}:{L+3}] offset:1024")
    a(f"v_mov_b32 v{tmp}, 0")
    a(f"v_mov_b32 v{tmp+1}, 4096")
    a(f"ds_write_b32 v{tmp+1}, v{tmp}")
    a("s_waitcnt lgkmcnt(0)")
    a("s_barrier")
    a("s_barrier")
    a.label(lp5)
    vmq.q = ['unk'] * 0
    a("s_waitcnt vmcnt(0)")
    g = B3.mk64(a, C, vmq, "g5b", 1792, C.vl16, True, noregs)
    a(f"s_mul_i32 s{s_r0}, s{C.s_nt}, 3")
    a(f"s_mul_i32 s{st}, s{C.s_mq}, 7")
    a(f"s_add_u32 s{s_r0}, s{s_r0}, s{st}")
    a(f"s_sub_u32 s{st}, s{s_r0}, 28")
    a(f"s_min_u32 s{s_r0}, s{s_r0}, s{st}")
    B3.set_offsets64(a, C, WS_H3, 112, r0=s_r0)
    for s in range(5): g.issue(s, None, SR['W4'], 'w')
    if wpf: l2_prefetch(SR['WO'], 4)
    a("s_barrier")
    for s in range(5): g.issue(s, WS, None, 'x')
    prod_loop(g, WS, SR['W4'], 5)
    a("s_barrier")
    g = B3.mk64(a, C, vmq, "g5a", 512, C.vl16, True, noregs)
    a(f"s_lshl_b32 s{s_r0}, s{C.s_mq}, 1")
    a(f"s_add_u32 s{s_r0}, s{s_r0}, s{C.s_nt}")
    a(f"s_and_b32 s{s_r0}, s{s_r0}, 7")
    B3.set_offsets64(a, C, WS_O, 32, r0=s_r0)
    for s in range(5): g.issue(s, None, SR['WO'], 'w')
    a("s_barrier")
    for s in range(5): g.issue(s, WS, None, 'x')
    prod_loop(g, WS, SR['WO'], 5)
    a.label(end)
    a("s_endpgm")
    return dict(name=name, vgpr=128, sgpr=100, grid=512, block=512, lds=max(RING, ATT_LDS))
```

```python
MB = 1 << 20
WS_Q  = 0 * MB
WS_K  = 2 * MB
WS_V  = 4 * MB
WS_H  = 6 * MB
WS_X1 = 8 * MB
WS_O  = 10 * MB
WS_B  = 12 * MB
WS_H3 = 14 * MB
WS_G  = 22 * MB
WS_CS3 = 22 * MB + 65536
WS_ST = 23 * MB
WS_FLAG = 24 * MB
WS_SIZE = 0x10000000
LOG2E = 1.4426950408889634
QSCALE = 0.25 * LOG2E
GK1 = -2.0 * 0.7978845608028654 * LOG2E
GK2 = GK1 * 0.044715
WS_F1 = WS_FLAG
WS_F2 = WS_FLAG + 1024
WS_F3 = WS_FLAG + 2048
FLAG_BYTES = 3072
WS_G1 = WS_FLAG
WS_G2 = WS_FLAG + 4096
WS_G3 = WS_FLAG + 8192
FLAG2_BYTES = 16384
```

```python
from build import build
from k1 import gen_k1
from k3 import gen_k3
import gemm3
gemm3.DBG.update(nomfma=False, noread=False, space=None, inter=False, lowprio=(1, 2), lowall=False)
build([lambda a: gen_k1(a, npre=2, hookmode="sc"), lambda a: gen_k3(a)], f"x6a.s")
build([lambda a: gen_k1(a, name="main_kernel", npre=2, hookmode="sc", unified="phase2"), lambda a: gen_k3(a, name="phase2", unified="main_kernel")], f"x6b.s")
```

```python
from asmlib import *
from common import *
from gemm import *

def gen_k1(a, name="k1_kernel", stamps=False, npre=3, hookmode="pk", prefetch=False, touch=False, unified=None):
    kernel_header(a, name)
    if unified:
        a("s_getreg_b32 s3, hwreg(HW_REG_LDS_ALLOC, 12, 10)")
        a("s_cmp_lt_u32 s3, 640")
        a(f"s_cbranch_scc1 {unified}")
    V = Regs(1, 124, 'v'); S = Regs(28, 56, 's')
    end = a.newlabel("k1_end")
    a("s_cmp_ge_u32 s2, 256")
    a(f"s_cbranch_scc1 {end}")
    a("s_load_dwordx4 s[4:7], s[0:1], 0")
    a("s_load_dwordx2 s[92:93], s[0:1], 32")
    a("s_load_dwordx2 s[94:95], s[0:1], 48")
    a("s_load_dwordx2 s[98:99], s[0:1], 88")
    T = Stamps(a, 60, 16, stamps)
    T.stamp()
    vlane = V.alloc("lane"); tmp = V.alloc("tmp", 8)
    s_wave = S.alloc("wave"); s_wn = S.alloc("wn"); s_wm = S.alloc("wm"); s_wk = S.alloc("wk")
    s_mblk = S.alloc("mblk"); s_j = S.alloc("j"); s_rot = S.alloc("rot")
    st = S.alloc("st", 6)
    s_ones = S.alloc("ones"); s_f0 = S.alloc("f0")
    a(f"v_and_b32 v{vlane}, 63, v0")
    a(f"v_lshrrev_b32 v{tmp}, 6, v0")
    a("s_nop 0")
    a(f"v_readfirstlane_b32 s{s_wave}, v{tmp}")
    a(f"s_and_b32 s{st}, s2, 7")
    a(f"s_lshr_b32 s{st+1}, s2, 3")
    a(f"s_lshr_b32 s{s_mblk}, s{st}, 1")
    a(f"s_lshl_b32 s{s_mblk}, s{s_mblk}, 2")
    a(f"s_and_b32 s{st+2}, s{st+1}, 3")
    a(f"s_add_u32 s{s_mblk}, s{s_mblk}, s{st+2}")
    a(f"s_and_b32 s{s_j}, s{st}, 1")
    a(f"s_lshl_b32 s{s_j}, s{s_j}, 3")
    a(f"s_lshr_b32 s{st+3}, s{st+1}, 2")
    a(f"s_add_u32 s{s_j}, s{s_j}, s{st+3}")
    a(f"s_lshl_b32 s{s_rot}, s{st+2}, 1")
    a(f"s_add_u32 s{s_rot}, s{s_rot}, s{st+3}")
    a(f"s_and_b32 s{s_rot}, s{s_rot}, 7")
    XS, WSP, W3 = 8, 16, 24
    SLOTS, STB = 5, 32768
    l_cons = a.newlabel("k1_cons"); l_pw = a.newlabel("k1_pw"); l_pside = a.newlabel("k1_pside")
    a(f"s_cmp_lt_u32 s{s_wave}, 8")
    a(f"s_cbranch_scc1 {l_cons}")
    a("s_setprio 3")
    pv = V.mark()
    p_x = V.alloc("px", 2); p_b = V.alloc("pb", 2, 2); p_st = V.alloc("pst"); p_ad = V.alloc("pad", 8, 2)
    c3 = V.alloc("c3", 32, 4); acc8 = V.alloc("acc8", 8, 4); sw8 = V.alloc("sw8", 8); vc3 = V.alloc("vc3")
    V.release(pv)
    s_k = st + 4; s_o = st + 5
    s_ph = S.alloc("ph"); s_mb = S.alloc("pm0")
    a(f"s_and_b32 s{s_ph}, s{s_wave}, 1")
    a(f"s_lshl_b32 s{s_mb}, s{s_ph}, 13")
    a(f"s_cmp_ge_u32 s{s_wave}, 10")
    a(f"s_cbranch_scc1 {l_pw}")
    for par in range(2):
        a(f"v_lshrrev_b32 v{tmp}, 4, v{vlane}")
        if par: a(f"v_add_u32 v{tmp}, 4, v{tmp}")
        a(f"v_and_b32 v{tmp+1}, 7, v{vlane}")
        a(f"v_xor_b32 v{tmp}, v{tmp}, v{tmp+1}")
        a(f"v_lshrrev_b32 v{tmp+1}, 3, v{vlane}")
        a(f"v_lshlrev_b32 v{tmp+1}, 10, v{tmp+1}")
        a(f"v_lshl_add_u32 v{p_x+par}, v{tmp}, 4, v{tmp+1}")
    a(f"s_lshl_b32 s{st}, s{s_mblk}, 17")
    a(f"s_lshl_b32 s{st+1}, s{s_ph}, 16")
    a(f"s_add_u32 s{st}, s{st}, s{st+1}")
    a(f"s_mov_b32 s{s_k}, s{s_rot}")
    a("s_waitcnt lgkmcnt(0)")
    srd(a, XS, 4, 2048 * 1024)
    vq = VMQ()
    def px_issue(stage):
        slot = stage % SLOTS
        a(f"s_lshl_b32 s{s_o}, s{s_k}, 7")
        a(f"s_add_u32 s{s_o}, s{s_o}, s{st}")
        for q in range(8):
            a(f"s_add_u32 m0, s{s_mb}, {slot * STB + q * 1024}")
            if q: a(f"s_add_u32 s{s_o}, s{s_o}, 8192")
            else: a("s_nop 0")
            a(f"buffer_load_dwordx4 v{p_x + (q & 1)}, s[{XS}:{XS+3}], s{s_o} offen lds")
            vq.issue(stage)
        a(f"s_add_u32 s{s_k}, s{s_k}, 1")
        a(f"s_and_b32 s{s_k}, s{s_k}, 7")
    def producer_loop(issue, side_issue):
        nd = 0
        for s_ in range(npre):
            issue(s_); nd += 1
        for sp in range(8):
            vq.wait(a, {sp})
            a("s_barrier")
            lim = min(7, max(sp - 2, -1) + SLOTS)
            k = 0
            while nd <= lim and k < 2:
                issue(nd); nd += 1; k += 1
                if nd == 8: side_issue()
        a("s_barrier")
    def side_issue():
        srd(a, W3, 94, 512 * 3584)
        a(f"s_mul_hi_u32 s{st+1}, s2, {(1 << 32) // 28 + 1}")
        a(f"s_mul_i32 s{st+2}, s{st+1}, 28")
        a(f"s_sub_u32 s{st+2}, s2, s{st+2}")
        a(f"s_lshl_b32 s{st+3}, s{st+1}, 2")
        a(f"s_add_u32 s{st+3}, s{st+3}, s{s_wave}")
        a(f"s_sub_u32 s{st+3}, s{st+3}, 8")
        a(f"s_mul_i32 s{s_o}, s{st+3}, {64 * 3584}")
        a(f"s_lshl_b32 s{s_k}, s{st+2}, 7")
        a(f"s_add_u32 s{s_o}, s{s_o}, s{s_k}")
        a(f"s_cmp_lt_u32 s2, 56")
        a(f"s_cselect_b32 s{s_o}, s{s_o}, 0x7f000000")
        a(f"v_lshrrev_b32 v{vc3}, 3, v{vlane}")
        a(f"v_mul_u32_u24 v{vc3}, 3584, v{vc3}")
        a(f"v_and_b32 v{tmp}, 7, v{vlane}")
        a(f"v_lshl_add_u32 v{vc3}, v{tmp}, 4, v{vc3}")
        for i in range(8):
            a(f"buffer_load_dwordx4 v[{c3+4*i}:{c3+4*i+3}], v{vc3}, s[{W3}:{W3+3}], s{s_o} offen")
            vq.issue('c3')
            if i < 7: a(f"s_add_u32 s{s_o}, s{s_o}, {8*3584}")
    producer_loop(px_issue, side_issue)
    a(f"s_branch {l_pside}")
    a.label(l_pw)
    a(f"v_lshrrev_b32 v{tmp}, 4, v{vlane}")
    a(f"v_lshlrev_b32 v{tmp+1}, 2, v{tmp}")
    a(f"v_and_b32 v{tmp+2}, 15, v{vlane}")
    a(f"v_xor_b32 v{tmp+1}, v{tmp+1}, v{tmp+2}")
    a(f"v_cmp_gt_u32 vcc, 12, v{tmp+1}")
    a(f"v_mov_b32 v{tmp+2}, 1024")
    a(f"v_mov_b32 v{tmp+3}, 3072")
    a(f"v_cndmask_b32 v{p_st}, v{tmp+2}, v{tmp+3}, vcc")
    a(f"v_mul_u32_u24 v{tmp}, v{tmp}, v{p_st}")
    a(f"v_lshl_add_u32 v{tmp}, v{tmp+1}, 4, v{tmp}")
    a(f"s_mul_i32 s{st}, s{s_j}, 192")
    a(f"s_lshl_b32 s{st+1}, s{s_j}, 6")
    a(f"s_sub_u32 s{st+1}, s{st+1}, 192")
    a(f"v_mov_b32 v{tmp+2}, s{st+1}")
    a(f"v_mov_b32 v{tmp+3}, s{st}")
    a(f"v_cndmask_b32 v{tmp+2}, v{tmp+2}, v{tmp+3}, vcc")
    a(f"v_add_u32 v{tmp}, v{tmp}, v{tmp+2}")
    a(f"s_mov_b32 s{s_k}, s{s_rot}")
    a("s_waitcnt lgkmcnt(0)")
    a(f"v_mov_b32 v{tmp+2}, s92")
    a(f"v_mov_b32 v{tmp+3}, s6")
    a(f"v_cndmask_b32 v{p_b}, v{tmp+2}, v{tmp+3}, vcc")
    a(f"v_mov_b32 v{tmp+2}, s93")
    a(f"v_mov_b32 v{tmp+3}, s7")
    a(f"v_cndmask_b32 v{p_b+1}, v{tmp+2}, v{tmp+3}, vcc")
    a(f"v_add_co_u32 v{p_b}, vcc, v{p_b}, v{tmp}")
    a("s_nop 1")
    a(f"v_addc_co_u32 v{p_b+1}, vcc, 0, v{p_b+1}, vcc")
    vq.q = []
    def pw_issue(stage):
        slot = stage % SLOTS
        a(f"s_lshl_b32 s{s_o}, s{s_k}, 6")
        a(f"s_lshl_b32 s{st}, s{s_ph}, 5")
        a(f"s_add_u32 s{s_o}, s{s_o}, s{st}")
        for q in range(8):
            ad = p_ad + 2 * (q % 4)
            a(f"v_mad_u64_u32 v[{ad}:{ad+1}], vcc, v{p_st}, s{s_o}, v[{p_b}:{p_b+1}]")
            a(f"s_add_u32 m0, s{s_mb}, {slot * STB + 16384 + q * 1024}")
            a(f"s_add_u32 s{s_o}, s{s_o}, 4")
            a(f"global_load_lds_dwordx4 v[{ad}:{ad+1}], off")
            vq.issue(stage)
        a(f"s_add_u32 s{s_k}, s{s_k}, 1")
        a(f"s_and_b32 s{s_k}, s{s_k}, 7")
    producer_loop(pw_issue, side_issue)
    a.label(l_pside)
    srd(a, WSP, 98, WS_SIZE)
    lnz = a.newlabel("k1_noz")
    a(f"s_cmp_lg_u32 s2, 100")
    a(f"s_cbranch_scc1 {lnz}")
    for e in range(4):
        a(f"v_mov_b32 v{acc8+e}, 0")
    a(f"s_sub_u32 s{st}, s{s_wave}, 8")
    a(f"s_lshl_b32 s{st}, s{st}, 12")
    a(f"s_add_u32 s{st}, s{st}, {WS_FLAG}")
    a(f"v_lshlrev_b32 v{tmp}, 4, v{vlane}")
    for e in range(4):
        a(f"buffer_store_dwordx4 v[{acc8}:{acc8+3}], v{tmp}, s[{WSP}:{WSP+3}], s{st} offen offset:{1024*e}")
    a.label(lnz)
    a(f"s_cmp_ge_u32 s2, 56")
    a(f"s_cbranch_scc1 {end}")
    a(f"s_mov_b32 s{st}, 0x00003f80")
    a(f"s_mov_b32 s{st+1}, 0x3f800000")
    for e in range(8):
        a(f"v_mov_b32 v{acc8+e}, 0")
    a("s_waitcnt vmcnt(0)")
    for i in range(8):
        for d in range(4):
            a(f"v_dot2_f32_bf16 v{acc8+2*d}, v{c3+4*i+d}, s{st}, v{acc8+2*d}")
            a(f"v_dot2_f32_bf16 v{acc8+2*d+1}, v{c3+4*i+d}, s{st+1}, v{acc8+2*d+1}")
    a("s_nop 3")
    for e in range(8):
        a(f"v_add_f32_dpp v{acc8+e}, v{acc8+e}, v{acc8+e} row_ror:8 row_mask:0xf bank_mask:0xf")
    for sw in ("v_permlane16_swap_b32", "v_permlane32_swap_b32"):
        for e in range(8):
            a(f"v_mov_b32 v{sw8+e}, v{acc8+e}")
        a("s_nop 1")
        for e in range(8):
            a(f"{sw} v{sw8+e}, v{acc8+e}")
        for e in range(8):
            a(f"v_add_f32 v{acc8+e}, v{acc8+e}, v{sw8+e}")
    a(f"s_mul_i32 s{st}, s{st+3}, {1792*4}")
    a(f"s_lshl_b32 s{st+1}, s{st+2}, 8")
    a(f"s_add_u32 s{st}, s{st}, s{st+1}")
    a(f"s_add_u32 s{st}, s{st}, {WS_CS3}")
    a(f"v_lshlrev_b32 v{tmp}, 5, v{vlane}")
    a("s_mov_b64 exec, 0xff")
    a(f"buffer_store_dwordx4 v[{acc8}:{acc8+3}], v{tmp}, s[{WSP}:{WSP+3}], s{st} offen")
    a(f"buffer_store_dwordx4 v[{acc8+4}:{acc8+7}], v{tmp}, s[{WSP}:{WSP+3}], s{st} offen offset:16")
    a(f"s_branch {end}")

    a.label(l_cons)
    vmq = VMQ()
    if prefetch:
        code_prefetch(a, vlane, 124, tmp, 56, s_wave)
    if touch:
        lt = a.newlabel("k1_touch")
        a(f"s_cmp_gt_u32 s{s_wave}, 5")
        a(f"s_cbranch_scc1 {lt}")
        a(f"s_lshl_b32 s56, s{s_wave}, 3")
        tbl = [88, 16, 40, 48, 56, 72]
        a(f"s_mov_b32 s57, {tbl[0]}")
        for w, off in enumerate(tbl[1:], 1):
            a(f"s_cmp_eq_u32 s{s_wave}, {w}")
            a(f"s_cselect_b32 s57, {off}, s57")
        a(f"s_load_dwordx2 s[58:59], s[0:1], s57")
        a(f"s_cmp_eq_u32 s{s_wave}, 0")
        a(f"s_cselect_b32 s56, 19, 15")
        a(f"s_mov_b32 s57, {512*1024}")
        a(f"s_cmp_ge_u32 s{s_wave}, 3")
        a(f"s_cselect_b32 s57, {1792*1024}, s57")
        a(f"s_cmp_eq_u32 s{s_wave}, 0")
        a(f"s_cselect_b32 s57, {WS_SIZE}, s57")
        a(f"v_lshlrev_b32 v{tmp}, s56, v{vlane}")
        a("s_waitcnt lgkmcnt(0)")
        a(f"s_mov_b32 s20, s58")
        a(f"s_and_b32 s21, s59, 0xffff")
        a(f"s_mov_b32 s22, s57")
        a(f"s_mov_b32 s23, 0x00020000")
        a(f"buffer_load_dword v124, v{tmp}, s[20:23], 0 offen")
        a.label(lt)
    a(f"s_lshr_b32 s{s_wn}, s{s_wave}, 2")
    a(f"s_and_b32 s{s_wm}, s{s_wave}, 3")
    a(f"s_mov_b32 s{s_wk}, 0")
    a(f"s_mov_b32 s{s_ones}, 0x3f803f80")
    a(f"s_mul_i32 s{s_f0}, s{s_j}, 3")
    a(f"s_lshl_b32 s{st}, s{s_wn}, 1")
    a(f"s_add_u32 s{s_f0}, s{s_f0}, s{st}")
    g = Gemm(a, V, S, vmq, name="g1", nw=8, TN=128, TM=128, wn=2, wm=4, wk=1, KC=64, K=512, slots=SLOTS,
             xmode='raw', korder='nat', consumer_only=True)
    g.alloc()
    g._setup2 = (vlane, tmp, st, s_wn, s_wm, s_wk)
    g.setup_reads()
    stat = V.alloc("stat", 2, 2); cs = stat
    vh = V.alloc("h"); vl32 = V.alloc("l32")
    pk = V.alloc("pk", 8, 4); vo = V.alloc("vo"); vov = V.alloc("vov")
    assert g.wf == g.xf + 12
    csr = g.xf; cst = g.xf + 16
    mean = V.alloc("mean"); rstd = V.alloc("rstd"); vk1 = V.alloc("vk1")
    s_mbg = S.alloc("mbg"); s_k2 = S.alloc("k2")
    a(f"v_lshrrev_b32 v{vh}, 5, v{vlane}")
    a(f"v_and_b32 v{vl32}, 31, v{vlane}")
    g.zero_acc()
    a(f"v_mov_b32 v{stat}, 0")
    a(f"v_mov_b32 v{stat+1}, 0")
    a(f"v_lshlrev_b32 v{vo}, 4, v{vlane}")
    a(f"v_lshrrev_b32 v{tmp}, 4, v{vl32}")
    a(f"v_lshlrev_b32 v{vov}, 16, v{tmp}")
    a(f"v_and_b32 v{tmp}, 15, v{vl32}")
    a(f"v_lshl_add_u32 v{vov}, v{tmp}, 4, v{vov}")
    a(f"v_lshl_add_u32 v{vov}, v{vh}, 8, v{vov}")
    a(f"v_mov_b32 v{vk1}, {hexf(GK1)}")
    a(f"s_mov_b32 s{s_k2}, {hexf(GK2)}")
    a(f"s_lshl_b32 s{s_mbg}, s{s_mblk}, 2")
    a(f"s_add_u32 s{s_mbg}, s{s_mbg}, s{s_wm}")
    a("s_waitcnt lgkmcnt(0)")
    srd(a, WSP, 98, WS_SIZE)
    T.stamp()
    up = pk; sacc = V.alloc("sacc", 4, 2)
    for r in range(4):
        a(f"v_mov_b32 v{sacc+r}, 0")
    def unpack(src):
        for r in range(4):
            a(f"v_lshlrev_b32 v{up+2*r}, 16, v{src+r}")
            a(f"v_and_b32 v{up+2*r+1}, 0xffff0000, v{src+r}")
    def hook0(s, ks, buf):
        if hookmode == "none": return
        x = g.xf + buf * 4
        unpack(x)
        for r in range(4):
            if hookmode == "pk":
                a(f"v_pk_add_f32 v[{sacc}:{sacc+1}], v[{sacc}:{sacc+1}], v[{up+2*r}:{up+2*r+1}]")
                a(f"v_pk_fma_f32 v[{sacc+2}:{sacc+3}], v[{up+2*r}:{up+2*r+1}], v[{up+2*r}:{up+2*r+1}], v[{sacc+2}:{sacc+3}]")
            else:
                for u in range(2):
                    a(f"v_add_f32 v{sacc+u}, v{sacc+u}, v{up+2*r+u}")
                    a(f"v_fmac_f32 v{sacc+2+u}, v{up+2*r+u}, v{up+2*r+u}")
    def hook1(s, ks, buf):
        if hookmode == "none": return
        w = g.wf + (buf * 2 + 1) * 4
        unpack(w)
        for r in range(4):
            if hookmode == "pk":
                q = sacc + 2 * (r & 1)
                a(f"v_pk_add_f32 v[{q}:{q+1}], v[{q}:{q+1}], v[{up+2*r}:{up+2*r+1}]")
            else:
                for u in range(2):
                    q = sacc + 2 * (r & 1) + u
                    a(f"v_add_f32 v{q}, v{q}, v{up+2*r+u}")
    L = {k: a.newlabel("k1_" + k) for k in ("0n", "0s", "1n", "1s", "e0", "e1", "w1")}
    a(f"s_cmp_eq_u32 s{s_wn}, 1")
    a(f"s_cbranch_scc1 {L['w1']}")
    a(f"s_cmp_lt_u32 s{s_f0}, 32")
    a(f"s_cbranch_scc1 {L['0n']}")
    Ti = T.i
    def qkv_epi(i):
        lv = a.newlabel("k1_ev"); ld = a.newlabel("k1_ed")
        a(f"s_add_u32 s{st+4}, s{s_f0}, {i}")
        a(f"s_and_b32 s{st}, s{st+4}, 15")
        a(f"s_lshl_b32 s{st}, s{st}, 7")
        a(f"s_add_u32 s{st}, s{st}, s{s_mbg}")
        a(f"s_lshl_b32 s{st}, s{st}, 10")
        a(f"s_lshr_b32 s{st+1}, s{st+4}, 4")
        a(f"s_lshl_b32 s{st+1}, s{st+1}, 21")
        a(f"s_add_u32 s{st}, s{st}, s{st+1}")
        a(f"s_cmp_ge_u32 s{st+4}, 32")
        a(f"s_cbranch_scc1 {lv}")
        a(f"s_cmp_lt_u32 s{st+4}, 16")
        a(f"s_cselect_b32 s{st+2}, {hexf(QSCALE)}, 1.0")
        for t in range(2):
            c = g.accreg(i, 0) + 8 * t
            for r in range(8):
                a(f"v_mul_f32 v{c+r}, s{st+2}, v{c+r}")
            p = pk + 4 * t
            pack8(a, c, p)
            a(f"s_add_u32 s{st+3}, s{st}, {t * 65536}")
            a(f"buffer_store_dwordx4 v[{p}:{p+3}], v{vo}, s[{WSP}:{WSP+3}], s{st+3} offen")
        a(f"s_branch {ld}")
        a.label(lv)
        for t in range(2):
            c = g.accreg(i, 0) + 8 * t
            p = pk + 4 * t
            pack8(a, c, p)
            a(f"buffer_store_dwordx4 v[{p}:{p+3}], v{vov}, s[{WSP}:{WSP+3}], s{st} offen offset:{t*512}")
        a.label(ld)
        a("s_nop 1")
    assert WS_Q == 0 and WS_K == 2 * MB and WS_V == 4 * MB
    for lab, sw in ((L['0s'], [True, True]), (L['0n'], [False, False])):
        a.label(lab)
        T.i = Ti
        g.mainloop(None, None, swap=sw, hook=hook0, T=T, stage_stamps=True)
        T.stamp()
        if lab == L['0s']:
            a(f"s_branch {L['e0']}")
    a.label(L['e0'])
    a(f"v_add_f32 v{stat}, v{sacc}, v{sacc+1}")
    a(f"v_add_f32 v{stat+1}, v{sacc+2}, v{sacc+3}")
    a(f"v_mov_b32 v{tmp+2}, v{stat}")
    a(f"v_mov_b32 v{tmp+3}, v{stat+1}")
    a("s_nop 1")
    a(f"v_permlane32_swap_b32 v{tmp+2}, v{stat}")
    a(f"v_permlane32_swap_b32 v{tmp+3}, v{stat+1}")
    a(f"v_add_f32 v{stat}, v{stat}, v{tmp+2}")
    a(f"v_add_f32 v{stat+1}, v{stat+1}, v{tmp+3}")
    a(f"s_lshl_b32 s{st}, s{s_wm}, 8")
    a(f"v_lshlrev_b32 v{tmp}, 3, v{vl32}")
    a(f"v_add_u32 v{tmp}, s{st}, v{tmp}")
    a(f"ds_write_b64 v{tmp}, v[{stat}:{stat+1}]")
    a("s_waitcnt lgkmcnt(0)")
    a("s_barrier")
    qkv_epi(0); qkv_epi(1)
    ldone = a.newlabel("k1_done")
    a(f"s_branch {ldone}")
    a.label(L['w1'])
    a(f"s_cmp_lt_u32 s{s_f0}, 32")
    a(f"s_cbranch_scc1 {L['1n']}")
    for lab, sw in ((L['1s'], [True, False]), (L['1n'], [False, False])):
        a.label(lab)
        T.i = Ti
        g.mainloop(None, None, swap=sw, hook=hook1, T=T, stage_stamps=True)
        T.stamp()
        if lab == L['1s']:
            a(f"s_branch {L['e1']}")
    a.label(L['e1'])
    a(f"v_add_f32 v{sacc}, v{sacc}, v{sacc+1}")
    a(f"v_add_f32 v{sacc+2}, v{sacc+2}, v{sacc+3}")
    a(f"v_add_f32 v{cs}, v{sacc}, v{sacc+2}")
    a(f"v_mov_b32 v{tmp+2}, v{cs}")
    a("s_nop 1")
    a(f"v_permlane32_swap_b32 v{tmp+2}, v{cs}")
    a(f"v_add_f32 v{cs}, v{cs}, v{tmp+2}")
    a(f"s_lshl_b32 s{st}, s{s_wm}, 7")
    a(f"v_lshlrev_b32 v{tmp}, 2, v{vl32}")
    a(f"v_add_u32 v{tmp}, s{st}, v{tmp}")
    a(f"ds_write_b32 v{tmp}, v{cs} offset:2048")
    a(f"v_lshlrev_b32 v{tmp+1}, 4, v{vh}")
    a(f"v_add_u32 v{tmp+1}, s{st}, v{tmp+1}")
    a("s_waitcnt lgkmcnt(0)")
    for aa in range(4):
        a(f"ds_read_b128 v[{csr+4*aa}:{csr+4*aa+3}], v{tmp+1} offset:{2048 + aa * 32}")
    a("s_barrier")
    a(f"s_lshl_b32 s{st}, s{s_wm}, 8")
    a(f"v_lshlrev_b32 v{tmp}, 3, v{vl32}")
    a(f"v_add_u32 v{tmp}, s{st}, v{tmp}")
    a(f"ds_read_b64 v[{stat}:{stat+1}], v{tmp}")
    qkv_epi(0)
    a("s_waitcnt lgkmcnt(0)")
    a(f"v_mul_f32 v{mean}, {hexf(1/512)}, v{stat}")
    a(f"v_mul_f32 v{stat+1}, {hexf(1/512)}, v{stat+1}")
    a(f"v_fma_f32 v{stat+1}, -v{mean}, v{mean}, v{stat+1}")
    a(f"v_max_f32 v{stat+1}, 0, v{stat+1}")
    a(f"v_add_f32 v{stat+1}, {hexf(1e-5)}, v{stat+1}")
    a(f"v_rsq_f32 v{rstd}, v{stat+1}")
    a(f"s_lshl_b32 s{st}, s{s_j}, 1")
    a(f"s_lshl_b32 s{st+1}, s{s_mbg}, 5")
    a(f"s_add_u32 s{st}, s{st}, s{st+1}")
    a(f"s_lshl_b32 s{st}, s{st}, 10")
    a(f"s_add_u32 s{st}, s{st}, {WS_H}")
    c = g.accreg(1, 0)
    for r in range(16):
        a(f"v_fma_f32 v{c+r}, -v{mean}, v{csr+r}, v{c+r}")
    for r in range(16):
        a(f"v_mul_f32 v{c+r}, v{c+r}, v{rstd}")
    gelu_vec(a, [c + r for r in range(16)], [cst + r for r in range(16)], vk1, s_k2)
    for t in range(2):
        p = pk + 4 * t
        pack8(a, c + 8 * t, p)
        a(f"buffer_store_dwordx4 v[{p}:{p+3}], v{vo}, s[{WSP}:{WSP+3}], s{st} offen offset:{t*1024}")
    a.label(ldone)
    T.stamp()
    if stamps:
        a("s_waitcnt vmcnt(0)")
        T.stamp()
    T.store(WSP, tmp, st, s_wave)
    a.label(end)
    a("s_endpgm")
    return dict(name=name, vgpr=128, sgpr=100, grid=256, block=768, lds=SLOTS * STB)
```

```python
from asmlib import *
from common import *
from gemm import VMQ
from gemm3 import G3, DBG
from broles import std_prologue, RING, unpack8, halves_sum, Ctx
from broles2 import P2
import broles3 as B3
from attn import attn_role, ATT_LDS

def wave_publish(a, tmp, WS, s_off):
    a("s_waitcnt vmcnt(0)")
    a(f"v_mov_b32 v{tmp}, 1")
    a(f"v_mov_b32 v{tmp+1}, 0")
    a("s_mov_b64 exec, 1")
    a(f"buffer_store_dword v{tmp}, v{tmp+1}, s[{WS}:{WS+3}], s{s_off} offen sc1")
    a("s_mov_b64 exec, -1")

def wg_publish(a, tmp, WS, s_off, lds_off, s_t):
    l = a.newlabel("wgp")
    a("s_waitcnt vmcnt(0)")
    a(f"v_mov_b32 v{tmp}, 1")
    a(f"v_mov_b32 v{tmp+1}, {lds_off}")
    a("s_mov_b64 exec, 1")
    a(f"ds_add_rtn_u32 v{tmp+2}, v{tmp+1}, v{tmp}")
    a("s_waitcnt lgkmcnt(0)")
    a(f"v_readfirstlane_b32 s{s_t}, v{tmp+2}")
    a(f"v_mov_b32 v{tmp+1}, 0")
    a(f"s_cmp_lg_u32 s{s_t}, 3")
    a(f"s_cbranch_scc1 {l}")
    a(f"buffer_store_dword v{tmp}, v{tmp+1}, s[{WS}:{WS+3}], s{s_off} offen sc1")
    a.label(l)
    a("s_mov_b64 exec, -1")

def poll(a, tmp, vl4, WS, s_off, n, s_lim, s_w4, slp=6):
    l = a.newlabel("wf"); lo = a.newlabel("wfo"); ld = a.newlabel("wfd")
    a(f"s_cmp_lg_u32 s{s_w4}, 0")
    a(f"s_cbranch_scc1 {ld}")
    if n < 64:
        assert n <= 32
        a(f"s_mov_b64 exec, {(1 << n) - 1:#x}")
    a(f"s_mov_b32 s{s_lim}, 200000")
    a.label(l)
    a(f"buffer_load_dword v{tmp}, v{vl4}, s[{WS}:{WS+3}], s{s_off} offen sc1")
    a("s_waitcnt vmcnt(0)")
    a(f"v_cmp_ne_u32 vcc, 1, v{tmp}")
    a("s_nop 1")
    a("s_cmp_eq_u64 vcc, 0")
    a(f"s_cbranch_scc1 {lo}")
    a(f"s_sleep {slp}")
    a(f"s_sub_u32 s{s_lim}, s{s_lim}, 1")
    a(f"s_cmp_lg_u32 s{s_lim}, 0")
    a(f"s_cbranch_scc1 {l}")
    a.label(lo)
    if n < 64: a("s_mov_b64 exec, -1")
    a.label(ld)
    a("s_barrier")

def cons_loop(g, T=None):
    a = g.a
    a("s_barrier")
    if T: T.rstamp()
    for n in range(g.PD): g.read_frags(n)
    total = g.nst * g.ksw
    for n in range(total):
        m = n + g.PD
        if m < total:
            if m % g.ksw == 0: a("s_barrier")
            g.read_frags(m)
        a(f"s_waitcnt lgkmcnt({min(g.PD, total - 1 - n) * 3 * g.nf})")
        g.mfmas(n % g.nbuf)

def reads64(a, C):
    t = C.tmp; st = C.st; vlane = C.vlane
    a(f"s_lshl_b32 s{st}, s{C.s_tj}, 12")
    a(f"v_add_u32 v{C.xa}, s{st}, v{C.vl16}")
    a(f"v_add_u32 v{C.xa+1}, 0x10000, v{C.xa}")
    a(f"v_bfe_u32 v{C.vr}, v{vlane}, 2, 2")
    a(f"v_and_b32 v{t}, 3, v{vlane}")
    a(f"v_lshlrev_b32 v{t}, 3, v{t}")
    a(f"v_bfe_u32 v{t+1}, v{vlane}, 4, 1")
    a(f"v_lshl_add_u32 v{C.lp}, v{t+1}, 5, v{t}")
    a(f"v_lshl_add_u32 v{t+1}, v{C.vh}, 2, v{C.vr}")
    a(f"v_lshl_add_u32 v{t+2}, v{t+1}, 7, v{C.lp}")
    a(f"v_lshrrev_b32 v{t}, 1, v{C.vr}")
    a(f"v_xor_b32 v{t}, s{C.s_ti}, v{t}")
    a(f"v_lshl_add_u32 v{C.wa}, v{t}, 6, v{t+2}")
    a(f"v_add_u32 v{C.wa+1}, 0x10000, v{C.wa}")

def cons64(a, C, name, K, acc, xf, wf):
    return G3(a, VMQ(), name=name, TN=64, KC=64, K=K, ksw=4, ks_stage=4, slots=5, acc=acc, xf=xf, wf=wf,
              xa=[C.xa, C.xa + 1], wa=[[C.wa, C.wa + 1]], xv=None, wv=None, wv2=None, s_xo=None, s_wo=None, s_m0=None,
              xstep=0, wstep=0, xjstride=0, PD=3, nf=1)

def prod_loop(g, xsrd, wsrd, issued, extra=None):
    a = g.a
    nd = issued
    for sp in range(g.nst):
        g.wait_stage(sp)
        a("s_barrier")
        if nd <= min(g.nst - 1, max(sp - 2, -1) + g.slots):
            g.issue(nd, xsrd, wsrd); nd += 1
        if extra: extra(sp)

def gen_k3(a, name="k2_kernel", stamps=False, bprio=2, lag=6, toggle=1, only=None, wpf=False, g3st=False, apf=False, unified=None):
    V = Regs(1, 128, 'v'); S = Regs(36, 84, 's')
    end, vlane, s_wave, SR = std_prologue(a, name, V, S, 512, False, label_only=bool(unified))
    T = Stamps(a, 84, 8, stamps)
    T.rstamp()
    WS = SR['WS']
    lb = a.newlabel("k2_b")
    a("s_cmp_ge_u32 s2, 256")
    a(f"s_cbranch_scc1 {lb}")
    vm, sm = V.mark(), S.mark()
    a("s_setprio 3")
    T.stamp()
    r = attn_role(a, V, S, vlane=vlane, s_wave=s_wave, s_unit=2, WSP=WS, ostore_flags="sc1", lag=lag, toggle=toggle, pf=SR if apf else None)
    st = r['st']
    a(f"s_lshr_b32 s{st}, s{r['s_mb']}, 3")
    a(f"s_lshl_b32 s{st}, s{st}, 5")
    a(f"s_add_u32 s{st}, s{st}, s{r['s_head']}")
    a(f"s_lshl_b32 s{st}, s{st}, 2")
    a(f"s_add_u32 s{st}, s{st}, {WS_G3}")
    from k2 import publish_flag
    publish_flag(a, r['tmp'], st, s_wave, WS, st)
    T.rstamp(); T.stamp()
    T.store(WS, r['tmp'], st, s_wave, slot=2)
    a(f"s_branch {end}")
    V.release(vm); S.release(sm)
    a.label(lb)
    T.i = 1
    if only == 'attn': a(f"s_branch {end}")
    a(f"s_setprio {bprio}")
    s_unit = S.alloc("unit"); s_f = S.alloc("sf"); s_w4 = S.alloc("w4")
    a(f"s_sub_u32 s{s_unit}, s2, 256")
    a(f"s_and_b32 s{s_w4}, s{s_wave}, 3")
    C = B3.bctx(a, V, S, vlane, s_w4, s_unit)
    st = C.st; tmp = C.tmp
    s_mb = S.alloc("g4mb"); s_nb = S.alloc("g4nb"); s_q = S.alloc("q"); s_r0 = S.alloc("r0")
    a(f"s_lshr_b32 s{s_q}, s{s_unit}, 3")
    a(f"s_and_b32 s{st}, s{s_unit}, 7")
    a(f"s_lshl_b32 s{s_mb}, s{st}, 1")
    a(f"s_and_b32 s{st+2}, s{s_q}, 1")
    a(f"s_add_u32 s{s_mb}, s{s_mb}, s{st+2}")
    a(f"s_lshr_b32 s{s_nb}, s{s_q}, 1")
    lprod = a.newlabel("k2_prod")
    a(f"s_cmp_ge_u32 s{s_wave}, 4")
    a(f"s_cbranch_scc1 {lprod}")
    vmk, smk = V.mark(), S.mark()
    acc = V.alloc("acc", 64, 4); xf = V.alloc("xf", 16, 4); wf = V.alloc("wf", 16, 4); ex = V.alloc("ex", 8, 4)
    regs = (acc, xf, wf)
    dummy = VMQ()
    reads64(a, C)
    a(f"s_lshl_b32 s{st+4}, s{C.s_kb}, 5")
    a(f"s_lshl_b32 s{st+5}, s{C.s_mbg}, 15")
    a(f"s_add_u32 s{st+5}, s{st+5}, s{st+4}")
    a(f"v_lshlrev_b32 v{tmp+6}, 3, v{C.vh}")
    a(f"v_lshl_add_u32 v{tmp+7}, v{C.vl32}, 10, v{tmp+6}")
    R = acc; X = acc + 16; G = acc + 32; Rr = acc + 48; xr = ex; gw = ex + 8 if False else None
    xr = Rr; gw = Rr + 8
    for aa in range(4):
        a(f"buffer_load_dwordx2 v[{xr+2*aa}:{xr+2*aa+1}], v{tmp+7}, s[{SR['X']}:{SR['X']+3}], s{st+5} offen offset:{16*aa}")
    for aa in range(4):
        a(f"buffer_load_dwordx2 v[{gw+2*aa}:{gw+2*aa+1}], v{tmp+6}, s[{SR['GW']}:{SR['GW']+3}], s{st+4} offen offset:{16*aa}")
    g = cons64(a, C, "g3", 512, R, xf, wf)
    if g3st: T.rstamp()
    a("s_waitcnt vmcnt(0)")
    unpack8(a, xr, X); unpack8(a, xr + 4, X + 8)
    unpack8(a, gw, G); unpack8(a, gw + 4, G + 8)
    s2 = ex
    a(f"v_pk_mul_f32 {P2(s2+4)}, {P2(X)}, {P2(G)}")
    for r_ in range(2, 16, 2):
        a(f"v_pk_fma_f32 {P2(s2+4)}, {P2(X+r_)}, {P2(G+r_)}, {P2(s2+4)}")
    a(f"s_lshl_b32 s{st}, s{C.s_mbg}, 5")
    a(f"s_add_u32 s{st}, s{st}, s{C.s_kb}")
    a(f"s_lshl_b32 s{st}, s{st}, 10")
    a(f"s_add_u32 s{st}, s{st}, {WS_X1}")
    a(f"s_lshl_b32 s{st+1}, s{C.s_mbg}, 13")
    a(f"s_lshl_b32 s{st+2}, s{C.s_kb}, 3")
    a(f"s_add_u32 s{st+1}, s{st+1}, s{st+2}")
    a(f"s_add_u32 s{st+1}, s{st+1}, {WS_ST}")
    cons_loop(g, T if g3st else None)
    if g3st: T.rstamp()
    pk = G; sv = G + 8
    a("s_nop 7")
    a("s_nop 3")
    for r_ in range(0, 16, 2): a(f"v_pk_add_f32 {P2(R+r_)}, {P2(R+r_)}, {P2(X+r_)}")
    pack8(a, R, pk); pack8(a, R + 8, pk + 4)
    for t in range(2):
        a(f"buffer_store_dwordx4 v[{pk+4*t}:{pk+4*t+3}], v{C.vl16}, s[{WS}:{WS+3}], s{st} offen offset:{1024*t} sc1")
    unpack8(a, pk, Rr); unpack8(a, pk + 4, Rr + 8)
    a(f"v_pk_add_f32 {P2(s2)}, {P2(Rr)}, {P2(Rr+2)}")
    a(f"v_pk_mul_f32 {P2(s2+2)}, {P2(Rr)}, {P2(Rr)}")
    for r_ in range(2, 16, 2):
        if r_ >= 4: a(f"v_pk_add_f32 {P2(s2)}, {P2(s2)}, {P2(Rr+r_)}")
        a(f"v_pk_fma_f32 {P2(s2+2)}, {P2(Rr+r_)}, {P2(Rr+r_)}, {P2(s2+2)}")
    for c in range(3): a(f"v_add_f32 v{sv+c}, v{s2+2*c}, v{s2+2*c+1}")
    halves_sum(a, [sv, sv + 1, sv + 2], [tmp + 2, tmp + 3, tmp + 4])
    a(f"v_lshlrev_b32 v{tmp}, 8, v{C.vl32}")
    a("s_mov_b64 exec, 0xffffffff")
    a(f"buffer_store_dwordx4 v[{sv}:{sv+3}], v{tmp}, s[{WS}:{WS+3}], s{st+1} offen sc1")
    a("s_mov_b64 exec, -1")
    a(f"v_mov_b32 v{tmp}, 0")
    a(f"v_mov_b32 v{tmp+1}, 4096")
    a(f"ds_write_b32 v{tmp+1}, v{tmp}")
    a("s_waitcnt lgkmcnt(0)")
    a("s_barrier")
    if g3st: T.rstamp()
    a(f"s_lshr_b32 s{s_f}, s{C.s_mt}, 1")
    a(f"s_lshl_b32 s{s_f}, s{s_f}, 6")
    a(f"s_and_b32 s{st}, s{C.s_mt}, 1")
    a(f"s_lshl_b32 s{st}, s{st}, 3")
    a(f"s_add_u32 s{s_f}, s{s_f}, s{st}")
    a(f"s_add_u32 s{s_f}, s{s_f}, s{C.s_nt}")
    a(f"s_lshl_b32 s{s_f}, s{s_f}, 2")
    a(f"s_add_u32 s{s_f}, s{s_f}, {WS_G1}")
    if g3st: T.rstamp()
    wg_publish(a, tmp, WS, s_f, 4096, st)
    T.rstamp()
    if g3st:
        T.store(WS, tmp, st, s_wave, slot=2)
        T.enabled = False
    lc5 = a.newlabel("k2_c5")
    a(f"s_cmp_ge_u32 s{s_q}, 28")
    a(f"s_cbranch_scc1 {lc5}")
    s_wn = C.s_ti; s_wm = C.s_tj; s_mbg = s_r0
    xa = C.xa; wa = C.wa; cs = 0; lnp = ex
    g = G3(a, dummy, name="g4", TN=128, KC=32, K=512, ksw=2, ks_stage=2, slots=5, acc=acc, xf=xf, wf=wf,
           xa=[xa, xa + 1], wa=[[wa, wa + 1], [wa + 2, wa + 3]], xv=None, wv=None, wv2=None,
           s_xo=None, s_wo=None, s_m0=None, xstep=0, wstep=0, xjstride=2048)
    a(f"s_lshl_b32 s{s_mbg}, s{s_mb}, 2")
    a(f"s_lshl_b32 s{st}, s{s_wm}, 1")
    a(f"s_add_u32 s{s_mbg}, s{s_mbg}, s{st}")
    a(f"s_lshl_b32 s{st}, s{s_wm}, 12")
    a(f"v_add_u32 v{xa}, s{st}, v{C.vl16}")
    a(f"v_add_u32 v{xa+1}, 0x10000, v{xa}")
    a(f"v_lshl_add_u32 v{tmp+1}, v{C.vh}, 2, v{C.vr}")
    a(f"v_lshl_add_u32 v{tmp+1}, v{tmp+1}, 8, v{C.lp}")
    a(f"s_lshl_b32 s{st}, s{s_wn}, 1")
    a(f"v_xor_b32 v{tmp}, s{st}, v{C.vr}")
    a(f"v_lshl_add_u32 v{wa}, v{tmp}, 6, v{tmp+1}")
    a(f"v_xor_b32 v{wa+2}, 64, v{wa}")
    a(f"v_add_u32 v{wa+1}, 0x10000, v{wa}")
    a(f"v_add_u32 v{wa+3}, 0x10000, v{wa+2}")
    a(f"v_lshlrev_b32 v{tmp+5}, 2, v{vlane}")
    a(f"s_lshl_b32 s{s_f}, s{s_mb}, 8")
    a(f"s_add_u32 s{s_f}, s{s_f}, {WS_G1}")
    poll(a, tmp, tmp + 5, WS, s_f, 16, st, s_w4)
    T.rstamp()
    cons_loop(g)
    a("s_barrier")
    a(f"s_lshl_b32 s{st}, s{s_wn}, 8")
    a(f"v_lshlrev_b32 v{tmp+1}, 4, v{C.vh}")
    a(f"v_add_u32 v{tmp+1}, s{st}, v{tmp+1}")
    a(f"s_lshl_b32 s{st}, s{s_wm}, 10")
    a(f"v_lshlrev_b32 v{tmp}, 4, v{C.vl32}")
    a(f"v_add_u32 v{tmp}, s{st}, v{tmp}")
    a("s_barrier")
    assert wf == xf + 16
    for i in range(2):
        for aa in range(4):
            a(f"ds_read_b128 v[{xf+16*i+4*aa}:{xf+16*i+4*aa+3}], v{tmp+1} offset:{i*128 + aa*32}")
    for j in range(2):
        a(f"ds_read_b128 v[{lnp+4*j}:{lnp+4*j+3}], v{tmp} offset:{1024 + 512*j}")
    a(f"s_mul_i32 s{st}, s{s_mbg}, 112")
    a(f"s_lshl_b32 s{st+1}, s{s_nb}, 3")
    a(f"s_add_u32 s{st}, s{st}, s{st+1}")
    a(f"s_lshl_b32 s{st+1}, s{s_wn}, 2")
    a(f"s_add_u32 s{st}, s{st}, s{st+1}")
    a(f"s_lshl_b32 s{st}, s{st}, 10")
    a(f"s_add_u32 s{st}, s{st}, {WS_H3}")
    a(f"s_add_u32 s{st+1}, s{st}, {112 * 1024}")
    a("s_waitcnt lgkmcnt(0)")
    for i in range(2):
        for j in range(2):
            c = g.accreg(i, j); L = lnp + 4 * j
            for r_ in range(0, 16, 2):
                a(f"v_pk_fma_f32 {P2(c+r_)}, {P2(xf+16*i+r_)}, {P2(L+2)}, {P2(c+r_)} op_sel:[0,1,0] op_sel_hi:[1,1,1]")
    ts = xf
    for i in range(2):
        for j in range(2):
            c = g.accreg(i, j); L = lnp + 4 * j
            pr = [(c + r_, ts + r_) for r_ in range(0, 16, 2)]
            for x, t in pr: a(f"v_pk_mul_f32 {P2(t)}, {P2(x)}, {P2(x)}")
            for x, t in pr: a(f"v_pk_fma_f32 {P2(t)}, {P2(t)}, {P2(L)}, {P2(L)} op_sel:[0,1,0] op_sel_hi:[1,1,0]")
            for x, t in pr: a(f"v_pk_mul_f32 {P2(t)}, {P2(t)}, {P2(x)}")
            for x, t in pr: a(f"v_exp_f32 v{t}, v{t}"); a(f"v_exp_f32 v{t+1}, v{t+1}")
            for x, t in pr: a(f"v_pk_fma_f32 {P2(t)}, {P2(t)}, {P2(L+2)}, {P2(L+2)} op_sel:[0,0,0] op_sel_hi:[1,0,0]")
            for x, t in pr: a(f"v_rcp_f32 v{t}, v{t}"); a(f"v_rcp_f32 v{t+1}, v{t+1}")
            for x, t in pr: a(f"v_pk_mul_f32 {P2(x)}, {P2(x)}, {P2(t)}")
            pack8(a, c, c); pack8(a, c + 8, c + 4)
            for t_ in range(2):
                a(f"buffer_store_dwordx4 v[{c+4*t_}:{c+4*t_+3}], v{C.vl16}, s[{WS}:{WS+3}], s{st+j} offen offset:{(2*i+t_)*1024} sc1")
    a("s_barrier")
    a(f"s_lshl_b32 s{s_f}, s{s_mb}, 6")
    a(f"s_add_u32 s{s_f}, s{s_f}, s{s_nb}")
    a(f"s_lshl_b32 s{s_f}, s{s_f}, 2")
    a(f"s_add_u32 s{s_f}, s{s_f}, {WS_G2}")
    wg_publish(a, tmp, WS, s_f, 4096, st + 2)
    reads64(a, C)
    a.label(lc5)
    T.i = 3
    T.rstamp()
    Rb = ex; gt = tmp + 6
    a(f"v_lshlrev_b32 v{tmp+5}, 2, v{vlane}")
    a(f"s_lshr_b32 s{s_f}, s{C.s_mt}, 1")
    a(f"s_lshl_b32 s{s_f}, s{s_f}, 8")
    a(f"s_add_u32 s{s_f}, s{s_f}, {WS_G2}")
    poll(a, tmp, tmp + 5, WS, s_f, 14, st, s_w4)
    T.rstamp()
    a(f"s_lshl_b32 s{st}, s{C.s_mbg}, 5")
    a(f"s_add_u32 s{st}, s{st}, s{C.s_kb}")
    a(f"s_lshl_b32 s{st}, s{st}, 10")
    a(f"s_add_u32 s{st}, s{st}, {WS_X1}")
    for t in range(2):
        a(f"buffer_load_dwordx4 v[{Rb+4*t}:{Rb+4*t+3}], v{C.vl16}, s[{WS}:{WS+3}], s{st} offen offset:{1024*t}")
    rsb = acc + 32
    B3.load_rowstats(a, C, SR, C.s_mbg, rsb, 0)
    Bq = acc + 16; Xq = acc
    g = cons64(a, C, "g5b", 1792, Bq, xf, wf)
    cons_loop(g)
    a("s_barrier")
    T.rstamp()
    a("s_waitcnt vmcnt(0)")
    for p in (2, 10, 18, 26): a(f"v_add_f32 v{rsb+p}, v{rsb+p}, v{rsb+p+4}")
    a(f"v_add_f32 v{rsb+2}, v{rsb+2}, v{rsb+10}")
    a(f"v_add_f32 v{rsb+18}, v{rsb+18}, v{rsb+26}")
    a(f"v_add_f32 v{gt}, v{rsb+2}, v{rsb+18}")
    halves_sum(a, [gt], [tmp + 2])
    a(f"v_mul_f32 v{gt}, {hexf(-LOG2E)}, v{gt}")
    a(f"v_exp_f32 v{gt}, v{gt}")
    a("s_nop 0")
    a(f"v_add_f32 v{gt}, 1.0, v{gt}")
    a(f"v_rcp_f32 v{gt}, v{gt}")
    a("s_nop 0")
    a(f"v_sub_f32 v{gt+1}, 1.0, v{gt}")
    unpack8(a, Rb, Xq); unpack8(a, Rb + 4, Xq + 8)
    s_oo = s_r0
    a(f"s_lshl_b32 s{st+4}, s{C.s_kb}, 5")
    a(f"s_lshl_b32 s{s_oo}, s{C.s_mbg}, 15")
    a(f"s_add_u32 s{s_oo}, s{s_oo}, s{st+4}")
    a(f"v_lshlrev_b32 v{tmp+4}, 4, v{C.vh}")
    a(f"v_lshl_add_u32 v{tmp+4}, v{C.vl32}, 10, v{tmp+4}")
    a("s_nop 7")
    for r_ in range(0, 16, 2): a(f"v_pk_add_f32 {P2(Bq+r_)}, {P2(Bq+r_)}, {P2(Xq+r_)}")
    for r_ in range(0, 16, 2): a(f"v_pk_mul_f32 {P2(Bq+r_)}, {P2(Bq+r_)}, {P2(gt)} op_sel:[0,1] op_sel_hi:[1,1]")
    g = cons64(a, C, "g5a", 512, R, xf, wf)
    Xq = acc + 32
    a(f"s_lshr_b32 s{s_f}, s{C.s_mt}, 2")
    a(f"s_lshl_b32 s{s_f}, s{s_f}, 7")
    a(f"s_add_u32 s{s_f}, s{s_f}, {WS_G3}")
    poll(a, tmp, tmp + 5, WS, s_f, 32, st, s_w4, slp=3)
    cons_loop(g)
    T.rstamp()
    a("s_nop 7")
    a("s_nop 3")
    for r_ in range(0, 16, 2): a(f"v_pk_fma_f32 {P2(R+r_)}, {P2(R+r_)}, {P2(gt)}, {P2(Bq+r_)} op_sel_hi:[1,0,1]")
    pack8(a, R, Xq); pack8(a, R + 8, Xq + 4)
    a("s_nop 1")
    for t in range(2):
        X_ = Xq + 4 * t
        a(f"v_permlane32_swap_b32 v{X_}, v{X_+2}")
        a(f"v_permlane32_swap_b32 v{X_+1}, v{X_+3}")
        a(f"buffer_store_dwordx4 v[{X_}:{X_+3}], v{tmp+4}, s[{SR['OUT']}:{SR['OUT']+3}], s{s_oo} offen offset:{32*t}")
    T.rstamp()
    T.store(WS, tmp, st, s_wave, slot=2)
    a(f"s_branch {end}")
    V.release(vmk); S.release(smk)
    a.label(lprod)
    vmq = VMQ()
    xv = V.alloc("xv", 4); wv4 = V.alloc("wv4", 2); vl4 = V.alloc("vl4"); junk = V.alloc("junk", 32, 4)
    s_pf = S.alloc("pf")
    noregs = (0, 0, 0)
    a(f"v_lshlrev_b32 v{vl4}, 2, v{vlane}")
    g = B3.mk64(a, C, vmq, "g3", 512, [xv + i for i in range(4)], False, noregs)
    B3.set_offsets64(a, C, WS_H - 32768, 32)
    g.issue(0, None, SR['W2'], 'w'); g.issue(1, None, SR['W2'], 'w')
    a(f"v_lshlrev_b32 v{tmp+2}, 9, v{C.vh}")
    for gi, s_ in enumerate([-1, 1, -2, 2]):
        a(f"v_add_u32 v{tmp}, {32 + s_}, v{C.vl32}")
        a(f"v_lshrrev_b32 v{tmp+1}, 5, v{tmp}")
        a(f"v_lshl_add_u32 v{tmp+1}, v{tmp+1}, 15, v{tmp+2}")
        a(f"v_and_b32 v{tmp}, 31, v{tmp}")
        a(f"v_lshl_add_u32 v{xv+gi}, v{tmp}, 4, v{tmp+1}")
    lnb = a.newlabel("g3_nb"); lhi = a.newlabel("g3_hi")
    a(f"s_lshl_b32 s{st}, s{C.s_mt}, 1")
    a(f"s_add_u32 s{st}, s{st}, s{C.s_ti}")
    a(f"s_cmp_eq_u32 s{st}, 63")
    a(f"s_cbranch_scc1 {lhi}")
    a(f"s_cmp_lg_u32 s{st}, 0")
    a(f"s_cbranch_scc1 {lnb}")
    a(f"v_mov_b32 v{tmp}, 0x7f000000")
    a(f"v_cmp_gt_u32 vcc, 1, v{C.vl32}")
    a("s_nop 1")
    a(f"v_cndmask_b32 v{xv}, v{xv}, v{tmp}, vcc")
    a(f"v_cmp_gt_u32 vcc, 2, v{C.vl32}")
    a("s_nop 1")
    a(f"v_cndmask_b32 v{xv+2}, v{xv+2}, v{tmp}, vcc")
    a(f"s_branch {lnb}")
    a.label(lhi)
    a(f"v_mov_b32 v{tmp}, 0x7f000000")
    a(f"v_cmp_lt_u32 vcc, 30, v{C.vl32}")
    a("s_nop 1")
    a(f"v_cndmask_b32 v{xv+1}, v{xv+1}, v{tmp}, vcc")
    a(f"v_cmp_lt_u32 vcc, 29, v{C.vl32}")
    a("s_nop 1")
    a(f"v_cndmask_b32 v{xv+3}, v{xv+3}, v{tmp}, vcc")
    a.label(lnb)
    g.issue(0, WS, None, 'x'); g.issue(1, WS, None, 'x')
    for s in range(2, 5): g.issue(s, WS, SR['W2'])
    a(f"v_lshrrev_b32 v{tmp}, 4, v{vlane}")
    a(f"v_lshlrev_b32 v{tmp+1}, 2, v{tmp}")
    a(f"v_and_b32 v{tmp+2}, 15, v{vlane}")
    a(f"v_xor_b32 v{tmp+1}, v{tmp+1}, v{tmp+2}")
    a(f"v_mul_u32_u24 v{tmp}, 3584, v{tmp}")
    a(f"v_lshl_add_u32 v{wv4}, v{tmp+1}, 4, v{tmp}")
    a(f"v_add_u32 v{wv4+1}, {4 * 3584 - 1024}, v{wv4}")
    def l2_prefetch(srd, nkb):
        a(f"s_lshl_b32 s{s_pf}, s{s_q}, 2")
        a(f"s_add_u32 s{s_pf}, s{s_pf}, s{s_w4}")
        a(f"s_mul_i32 s{s_pf}, s{s_pf}, {nkb * 1024}")
        for i in range(nkb):
            j = junk + 4 * (i % 8)
            a(f"buffer_load_dwordx4 v[{j}:{j+3}], v{C.vl16}, s[{srd}:{srd+3}], s{s_pf} offen offset:{(i % 4) * 1024}")
            vmq.issue('pf')
            if i % 4 == 3 and i + 1 < nkb: a(f"s_add_u32 s{s_pf}, s{s_pf}, 4096")
    prod_loop(g, WS, SR['W2'], 5, extra=(lambda sp: l2_prefetch(SR['W3'], 14) if (sp == 4 and wpf) else None))
    a("s_barrier")
    lp5 = a.newlabel("k2_p5")
    a(f"s_cmp_ge_u32 s{s_q}, 28")
    ldo4 = a.newlabel("k2_do4")
    a(f"s_cbranch_scc0 {ldo4}")
    q_save = list(vmq.q)
    if wpf: l2_prefetch(SR['W4'], 14)
    vmq.q = q_save
    a(f"s_branch {lp5}")
    a.label(ldo4)
    g = G3(a, vmq, name="g4", TN=128, KC=32, K=512, ksw=2, ks_stage=2, slots=5, acc=0, xf=0, wf=0, xa=None, wa=None,
           xv=C.vl16, wv=wv4, wv2=wv4 + 1, s_xo=C.s_xo, s_wo=C.s_wo, s_m0=C.s_m0w, xstep=2048, wstep=32 * 3584, xjstride=2048,
           rot=(C.s_ri, C.s_rj, C.s_rt))
    g.kx = C.s_kx; g.kw = C.s_kw
    a(f"s_and_b32 s{st+2}, s{s_q}, 1")
    a(f"s_lshl_b32 s{st+2}, s{st+2}, 3")
    a(f"s_add_u32 s{st+2}, s{st+2}, s{s_nb}")
    a(f"s_and_b32 s{C.s_ri}, s{st+2}, 15")
    a(f"s_mov_b32 s{C.s_rj}, s{C.s_ri}")
    a(f"s_movk_i32 s{C.s_kx}, 2048")
    a(f"s_mov_b32 s{C.s_kw}, {32 * 3584}")
    a(f"s_mul_i32 s{C.s_wo}, s{s_w4}, {8 * 3584}")
    a(f"s_lshl_b32 s{st}, s{s_nb}, 8")
    a(f"s_add_u32 s{C.s_wo}, s{C.s_wo}, s{st}")
    a(f"s_mul_i32 s{st}, s{C.s_ri}, {32 * 3584}")
    a(f"s_add_u32 s{C.s_wo}, s{C.s_wo}, s{st}")
    a(f"s_lshl_b32 s{st}, s{s_mb}, 2")
    a(f"s_add_u32 s{st}, s{st}, s{s_w4}")
    a(f"s_lshl_b32 s{st}, s{st}, 5")
    a(f"s_lshl_b32 s{st+1}, s{C.s_ri}, 1")
    a(f"s_add_u32 s{st}, s{st}, s{st+1}")
    a(f"s_lshl_b32 s{st}, s{st}, 10")
    a(f"s_add_u32 s{C.s_xo}, s{st}, {WS_X1}")
    for s in range(5): g.issue(s, None, SR['W3'], 'w')
    cp = V.alloc("pcp", 8, 4); rs = junk; L = V.alloc("pL", 4, 4)
    a(f"s_lshl_b32 s{st}, s{s_nb}, 9")
    a(f"s_lshl_b32 s{st+1}, s{C.s_tj}, 8")
    a(f"s_add_u32 s{st}, s{st}, s{st+1}")
    a(f"s_add_u32 s{st}, s{st}, {WS_CS3}")
    for p in range(8):
        a(f"buffer_load_dword v{cp+p}, v{vl4}, s[{WS}:{WS+3}], s{st} offen")
        vmq.issue('cp')
        if p < 7: a(f"s_add_u32 s{st}, s{st}, {1792*4}")
    a("s_barrier")
    for s in range(5): g.issue(s, WS, None, 'x')
    a(f"s_lshl_b32 s{s_f}, s{s_mb}, 2")
    a(f"s_add_u32 s{s_f}, s{s_f}, s{s_w4}")
    B3.load_rowstats(a, C, SR, s_f, rs, 0)
    for _ in range(8): vmq.issue('rs')
    def g4_extra(sp):
        if sp == 12:
            vmq.wait(a, {'rs'})
            for p in range(0, 8, 4): a(f"v_pk_add_f32 {P2(cp+p)}, {P2(cp+p)}, {P2(cp+p+2)}")
            a(f"v_pk_add_f32 {P2(cp)}, {P2(cp)}, {P2(cp+4)}")
            a(f"v_add_f32 v{cp}, v{cp}, v{cp+1}")
            d = rs
            for p in (0, 8, 16, 24): a(f"v_pk_add_f32 {P2(d+p)}, {P2(d+p)}, {P2(d+p+4)}")
            a(f"v_pk_add_f32 {P2(d)}, {P2(d)}, {P2(d+8)}")
            a(f"v_pk_add_f32 {P2(d+16)}, {P2(d+16)}, {P2(d+24)}")
            a(f"v_pk_add_f32 {P2(d)}, {P2(d)}, {P2(d+16)}")
            halves_sum(a, [d, d + 1], [tmp + 2, tmp + 3])
            a(f"v_mul_f32 v{L+3}, {hexf(-1/512)}, v{d}")
            a(f"v_mul_f32 v{d+1}, {hexf(1/512)}, v{d+1}")
            a(f"v_fma_f32 v{d+1}, -v{L+3}, v{L+3}, v{d+1}")
            a(f"v_max_f32 v{d+1}, 0, v{d+1}")
            a(f"v_add_f32 v{d+1}, {hexf(1e-5)}, v{d+1}")
            a(f"v_rsq_f32 v{d+2}, v{d+1}")
            a(f"v_sqrt_f32 v{L+2}, v{d+1}")
            a(f"v_mul_f32 v{L}, {hexf(GK1)}, v{d+2}")
            a(f"v_mul_f32 v{d+3}, v{d+2}, v{d+2}")
            a(f"v_mul_f32 v{d+3}, v{d+3}, v{d+2}")
            a(f"v_mul_f32 v{L+1}, {hexf(GK2)}, v{d+3}")
            a(f"s_lshl_b32 s{st}, s{C.s_tj}, 8")
            a(f"v_add_u32 v{tmp+4}, s{st}, v{vl4}")
            a(f"s_lshl_b32 s{st}, s{s_w4}, 9")
            a(f"v_lshlrev_b32 v{tmp+5}, 4, v{C.vl32}")
            a(f"v_add_u32 v{tmp+5}, s{st}, v{tmp+5}")
            if wpf: l2_prefetch(SR['W4'], 14)
    prod_loop(g, WS, SR['W3'], 5, extra=g4_extra)
    a("s_barrier")
    a(f"ds_write_b32 v{tmp+4}, v{cp}")
    a(f"ds_write_b128 v{tmp+5}, v[{L}:{L+3}] offset:1024")
    a(f"v_mov_b32 v{tmp}, 0")
    a(f"v_mov_b32 v{tmp+1}, 4096")
    a(f"ds_write_b32 v{tmp+1}, v{tmp}")
    a("s_waitcnt lgkmcnt(0)")
    a("s_barrier")
    a("s_barrier")
    a.label(lp5)
    vmq.q = ['unk'] * 0
    a("s_waitcnt vmcnt(0)")
    g = B3.mk64(a, C, vmq, "g5b", 1792, C.vl16, True, noregs)
    a(f"s_mul_i32 s{s_r0}, s{C.s_nt}, 3")
    a(f"s_mul_i32 s{st}, s{C.s_mq}, 7")
    a(f"s_add_u32 s{s_r0}, s{s_r0}, s{st}")
    a(f"s_sub_u32 s{st}, s{s_r0}, 28")
    a(f"s_min_u32 s{s_r0}, s{s_r0}, s{st}")
    B3.set_offsets64(a, C, WS_H3, 112, r0=s_r0)
    for s in range(5): g.issue(s, None, SR['W4'], 'w')
    if wpf: l2_prefetch(SR['WO'], 4)
    a("s_barrier")
    for s in range(5): g.issue(s, WS, None, 'x')
    prod_loop(g, WS, SR['W4'], 5)
    a("s_barrier")
    g = B3.mk64(a, C, vmq, "g5a", 512, C.vl16, True, noregs)
    a(f"s_lshl_b32 s{s_r0}, s{C.s_mq}, 1")
    a(f"s_add_u32 s{s_r0}, s{s_r0}, s{C.s_nt}")
    a(f"s_and_b32 s{s_r0}, s{s_r0}, 7")
    B3.set_offsets64(a, C, WS_O, 32, r0=s_r0)
    for s in range(5): g.issue(s, None, SR['WO'], 'w')
    a("s_barrier")
    for s in range(5): g.issue(s, WS, None, 'x')
    prod_loop(g, WS, SR['WO'], 5)
    a.label(end)
    a("s_endpgm")
    return dict(name=unified or name, vgpr=128, sgpr=100, grid=512, block=512, lds=max(RING, ATT_LDS))
```
